```python
import torch

def _softmax(x, axis=-1):
    return torch.softmax(x, dim=axis)
def _gelu(x):
    return torch.nn.functional.gelu(x, approximate="tanh")
def _silu(x):
    return torch.nn.functional.silu(x)
def _sigmoid(x):
    return torch.sigmoid(x)
def _layernorm(x, axis=-1, eps=1e-5):
    m = x.mean(dim=axis, keepdim=True)
    v = x.var(dim=axis, keepdim=True, unbiased=False)
    return (x - m) / torch.sqrt(v + eps)
def _scatter_add(tgt, idx, src, axis=0):
    return tgt.clone().index_add_(axis, idx, src)
def _segment_sum(src, seg, n):
    out = torch.zeros((n,) + src.shape[1:], dtype=src.dtype)
    return out.index_add_(0, seg, src)
def _pad(x, pw):
    flat = tuple(v for pair in reversed(pw) for v in pair)
    return torch.nn.functional.pad(x, flat)

kernel_name = 'parallel_sum__sliding_local_dilated__glu_gated_bilinear__prompt'

def setup_inputs():

    _w = (lambda a: (lambda t: t.to(torch.bfloat16) if t.is_floating_point() else t)(torch.as_tensor(a)))
    def _A_setup():
        B, S, D = 1, 2048, 1024
        return {
            "x": _w((lambda *s: torch.randn(*s, dtype=torch.bfloat16) * 0.05)(B, S, D)),
            "wqkv": _w((lambda *s: torch.randn(*s, dtype=torch.bfloat16) * 0.05)(D, 3 * D)),
            "wo": _w((lambda *s: torch.randn(*s, dtype=torch.bfloat16) * 0.05)(D, D)),
        }
    _A_in = _A_setup()

    def _B_setup():
        B, S, D, F = 1, 2048, 1024, 3584
        return {
            "x": _w((lambda *s: torch.randn(*s, dtype=torch.bfloat16) * 0.05)(B, S, D)),
            "w_gate": _w((lambda *s: torch.randn(*s, dtype=torch.bfloat16) * 0.8)(D, F) * (D ** -0.5)),
            "w_up": _w((lambda *s: torch.randn(*s, dtype=torch.bfloat16) * 0.8)(D, F) * (D ** -0.5)),
            "w_down": _w((lambda *s: torch.randn(*s, dtype=torch.bfloat16) * 0.8)(F, D) * (F ** -0.5)),
        }
    _B_in = _B_setup()

    return {
        "A_x": _A_in["x"],
        "A_wqkv": _A_in["wqkv"],
        "A_wo": _A_in["wo"],
        "B_x": _B_in["x"],
        "B_w_gate": _B_in["w_gate"],
        "B_w_up": _B_in["w_up"],
        "B_w_down": _B_in["w_down"],
    }

def reference(A_x, A_wqkv, A_wo, B_x, B_w_gate, B_w_up, B_w_down):
    def _A_ref(x, wqkv, wo):
        B, S, D = x.shape
        H = 32; Dh = D // H
        W, dil = 8, 2
        qkv = (lambda x, *d: x.permute(*d))((x @ wqkv).reshape(B, S, 3, H, Dh), 2, 0, 3, 1, 4)
        q, k, v = qkv[0], qkv[1], qkv[2]
        scale = Dh ** -0.5
        pos = torch.arange(S)
        off = torch.arange(W) * dil
        idx = pos[:, None] - off[None, :]
        mask = idx >= 0
        idx_c = torch.where(mask, idx, 0).reshape(-1)
        kg = k[:, :, idx_c, :].reshape(B, H, S, W, Dh)
        vg = v[:, :, idx_c, :].reshape(B, H, S, W, Dh)
        logits = torch.einsum("bhsd,bhswd->bhsw", q, kg) * scale
        logits = torch.where(mask[None, None, :, :], logits, -1e9)
        attn = _softmax(logits, axis=-1)
        o = torch.einsum("bhsw,bhswd->bhsd", attn, vg)
        return (lambda x, *d: x.permute(*d))(o, 0, 2, 1, 3).reshape(B, S, D) @ wo

    def _B_ref(x, w_gate, w_up, w_down):
        g = torch.einsum("bsd,df->bsf", x, w_gate)
        u = torch.einsum("bsd,df->bsf", x, w_up)
        h = g * u
        return torch.einsum("bsf,fd->bsd", h, w_down)

    x = A_x
    xn = _layernorm(x, axis=-1)
    return x + _A_ref(xn, A_wqkv, A_wo) + _B_ref(xn, B_w_gate, B_w_up, B_w_down)
```

```python
NAME = "parallel_sum__sliding_local_dilated__glu_gated_bilinear__prompt"

class Asm:
    def __init__(self):
        self.lines = []
        self.launch = []
        self.kds = []
    def __call__(self, s=""):
        for l in s.split("\n"):
            self.lines.append("    " + l.strip() if l.strip() and not l.strip().endswith(":") else l.strip())
    def label(self, s):
        self.lines.append(s + ":")
    def comment(self, s):
        self.lines.append("    ; " + s)
    def kernel(self, name, grid, block, lds, vgpr, agpr=0, sgpr=102):
        self.launch.append(f"; @launch kernel={name} grid=({grid[0]},{grid[1]},{grid[2]}) block=({block},1,1) lds={lds}")
        acc_off = (vgpr + 3) // 4 * 4
        nfv = acc_off + agpr if agpr else vgpr
        self.lines.append(f".globl {name}")
        self.lines.append(".p2align 8")
        self.lines.append(f".type {name},@function")
        self.lines.append(f"{name}:")
        kd = f""".p2align 6
.amdhsa_kernel {name}
  .amdhsa_next_free_vgpr {nfv}
  .amdhsa_next_free_sgpr {sgpr}
  .amdhsa_accum_offset {acc_off}
  .amdhsa_group_segment_fixed_size 0
  .amdhsa_kernarg_size 80
  .amdhsa_user_sgpr_count 2
  .amdhsa_user_sgpr_kernarg_segment_ptr 1
  .amdhsa_system_sgpr_workgroup_id_x 1
  .amdhsa_float_denorm_mode_32 3
.end_amdhsa_kernel"""
        self.kds.append(kd)
    def relaunch(self, name, grid, block, lds):
        self.launch.append(f"; @launch kernel={name} grid=({grid[0]},{grid[1]},{grid[2]}) block=({block},1,1) lds={lds}")
    def text(self, header=""):
        s = header
        s += "\n".join(self.launch) + "\n"
        s += '.amdgcn_target "amdgcn-amd-amdhsa--gfx950"\n.text\n'
        s += "\n".join(self.lines) + "\n"
        s += '.section .rodata,"a"\n' + "\n".join(self.kds) + "\n"
        return s
    def srd(self, d, karg_off_reg, nbytes):
        p = karg_off_reg
        self(f"s_mov_b32 s{d}, s{p}")
        self(f"s_and_b32 s{d+1}, s{p+1}, 0xffff")
        self(f"s_mov_b32 s{d+2}, {nbytes}")
        self(f"s_mov_b32 s{d+3}, 0x00020000")
```

```python
import sys, math, struct, json
from asmlib import *

def f32bits(x): return struct.unpack("<I", struct.pack("<f", x))[0]

WS_XN = 0
WS_A2 = 4 << 20
A2_BYTES = 144 * 128 * 1024
WS_PART = 24 << 20
WS_FLAG = 40 << 20
F1_OFF, F2_OFF, F3_OFF, EP_OFF = 0, 0x10000, 0x30000, 0x50000
FLAG_BYTES = 0x50080
WS_TL = 48 << 20

P_X, P_QKV, P_WO, P_BX, P_G, P_U, P_D, P_OUT, P_DBG, P_WS = 64, 66, 68, 70, 72, 74, 76, 78, 80, 82
S_EP = 96
S_FL = 84
S_TL = [88, 90, 98, 100]

def srd(a, d, p, off, nbytes):
    if off == 0:
        a(f"s_mov_b32 s{d}, s{p}"); a(f"s_and_b32 s{d+1}, s{p+1}, 0xffff")
    else:
        a(f"s_add_u32 s{d}, s{p}, {off}"); a(f"s_addc_u32 s{d+1}, s{p+1}, 0"); a(f"s_and_b32 s{d+1}, s{d+1}, 0xffff")
    a(f"s_mov_b32 s{d+2}, {nbytes}"); a(f"s_mov_b32 s{d+3}, 0x00020000")

def bf16_round(a, dst, src):
    a(f"v_cvt_pk_bf16_f32 {dst}, {src}, {src}")
    a(f"v_lshlrev_b32 {dst}, 16, {dst}")

_pollid = [0]
def poll(a, vaddr, vtmp, nl, P):
    i = _pollid[0]; _pollid[0] += 1
    sc = P.get("scl", "sc1")
    a(f"s_mov_b64 exec, {hex((1 << nl) - 1)}" if nl <= 32 else f"s_mov_b32 exec_lo, -1\ns_mov_b32 exec_hi, {hex((1 << (nl - 32)) - 1)}")
    a("s_mov_b32 s47, 0x40000")
    a.label(f"L_poll{i}")
    a(f"buffer_load_dword {vtmp}, {vaddr}, s[{S_FL}:{S_FL+3}], 0 offen {sc}")
    a("s_waitcnt vmcnt(0)")
    a(f"v_cmp_ne_u32 vcc, s{S_EP}, {vtmp}")
    a("s_nop 4")
    a(f"s_cbranch_vccz L_pollok{i}")
    a("s_sub_u32 s47, s47, 1")
    a("s_cmp_eq_u32 s47, 0")
    a("s_cbranch_scc1 L_end")
    a(f"s_sleep {P.get('sleep', 1)}")
    a(f"s_branch L_poll{i}")
    a.label(f"L_pollok{i}")
    a("s_mov_b64 exec, -1")

def flag_store(a, soff, vz, ve, P):
    a(f"v_mov_b32 {vz}, 0"); a(f"v_mov_b32 {ve}, s{S_EP}")
    a("s_mov_b64 exec, 1")
    a(f"buffer_store_dword {ve}, {vz}, s[{S_FL}:{S_FL+3}], {soff} offen {P.get('scs', 'sc1')}")
    a("s_mov_b64 exec, -1")

def stamp(a, P, i):
    if P.get("tl"):
        a("s_memrealtime s[88:89]")
        a("s_waitcnt lgkmcnt(0)")
        a(f"v_writelane_b32 v255, s88, {i}")

STG = 37888
OFF_Q = 17408
OFF_G = OFF_Q + 6144
OFF_U = OFF_G + 7168
XCH = 4 * STG
NRING = 8
V_X = [4, 24]
V_W = 44
V_Q = 76
V_K = 108
V_V = 140
V_H = 172
V_DMA = 176
V_RX = 186
V_RH = 188
V_RQ = 190
V_RG = 194
V_T = 196
NV = 256

def dma_slots(w): return list(range(*[(0,9),(9,17),(17,27),(27,37)][w]))
def slot_info(s):
    if s < 17: return ("A", s)
    if s < 23: return ("Q", s-17)
    if s < 30: return ("G", s-23)
    return ("U", s-30)
def dma_groups(w):
    sl = dma_slots(w)
    if w == 0: return [[0], [1,2,3,4], [5,6,7,8]]
    gs = []
    while sl:
        gs.append(sl[:4]); sl = sl[4:]
    return gs
CBS = [("q",0),("q",1),("k",0),("k",1),("v",0),("v",1)] + [(t,j) for j in range(7) for t in ("g","u")]
def acc_reg(cb, tb):
    t, j = CBS[cb]
    if t == "q": return f"v[{V_Q+(tb*2+j)*4}:{V_Q+(tb*2+j)*4+3}]"
    if t == "k": return f"v[{V_K+(tb*2+j)*4}:{V_K+(tb*2+j)*4+3}]"
    if t == "v": return f"v[{V_V+(tb*2+j)*4}:{V_V+(tb*2+j)*4+3}]"
    n = ((j*2 + (t == "u"))*4 + tb)*4
    return f"a[{n}:{n+3}]"
def w_read(cb, st, h, slot):
    t, j = CBS[cb]
    hi = st >= 2
    stoff = (st - 2*hi) * STG
    d = V_W + slot*4 + h*2
    if t in "qkv":
        base = V_RQ + 2*j + hi
        off = stoff + OFF_Q + h*3072 + "qkv".index(t)*64
    else:
        base = V_RG + hi
        off = stoff + (0 if t == "g" else 7168) + h*3584 + j*32
    assert off < 65536
    return f"ds_read_b64_tr_b16 v[{d}:{d+1}], v{base} offset:{off}"
def x_read(i, st, xs):
    hi = st >= 2
    stoff = (st - 2*hi) * STG
    d = V_X[xs] + i*4
    if i < 4: return f"ds_read_b128 v[{d}:{d+3}], v{V_RX+hi} offset:{stoff + i*1024}"
    return f"ds_read_b128 v[{d}:{d+3}], v{V_RH+hi} offset:{stoff}"
def mfma(cb, tb, xs, slot, halo=False):
    t, j = CBS[cb]
    wv = f"v[{V_W+slot*4}:{V_W+slot*4+3}]"
    xi = 4 if halo else tb
    xv = f"v[{V_X[xs]+xi*4}:{V_X[xs]+xi*4+3}]"
    acc = f"v[{V_H}:{V_H+3}]" if halo else acc_reg(cb, tb)
    if t == "v": return f"v_mfma_f32_16x16x32_bf16 {acc}, {xv}, {wv}, {acc}"
    return f"v_mfma_f32_16x16x32_bf16 {acc}, {wv}, {xv}, {acc}"
SRDN = {"A": 8, "Q": 12, "G": 16, "U": 20}
SOFF = {"A": 28, "Q": 29, "G": 30, "U": 30}
def dma_ops(w, buf, P):
    ops = []; vi = 0
    for g in dma_groups(w):
        for gi, s in enumerate(g):
            kind, _ = slot_info(s)
            ins = []
            if gi == 0: ins.append(("m0", f"s_mov_b32 m0, {buf*STG + g[0]*1024}"))
            sc = P.get("scl", "sc1") + " " if kind == "A" else ""
            ins.append(("dma", f"buffer_load_dwordx4 v{V_DMA+vi}, s[{SRDN[kind]}:{SRDN[kind]+3}], s{SOFF[kind]} offen offset:{gi*1024} {sc}lds"))
            ops.append(ins); vi += 1
    return ops
def soff_adv(w):
    kinds = sorted(set(SOFF[slot_info(s)[0]] for s in dma_slots(w)))
    inc = {28: 131072, 29: 32*6144, 30: 32*7168}
    return [f"s_add_u32 s{k}, s{k}, {inc[k]}" for k in kinds]

def g1_segment(a, w, st, P, last_tail=False):
    TAIL = 4
    n = len(dma_slots(w))
    xs = st & 1
    ringbase = (st * 20) % NRING
    prevbase = ((st - 1) * 20) % NRING
    mf = []
    for cb in range(20 - TAIL, 20):
        for tb in range(4):
            mf.append((mfma(cb, tb, xs ^ 1, (prevbase + cb) % NRING), None))
    if last_tail:
        for m, _ in mf: a(m)
        return
    ntail = len(mf)
    cbstart = {}
    for cb in range(0, 20 - TAIL):
        cbstart[cb] = len(mf)
        for tb in range(4):
            need = [("W", cb)] + ([("X", tb)] if cb == 0 else [])
            mf.append((mfma(cb, tb, xs, (ringbase + cb) % NRING), need))
        if cb == 2 + w:
            mf.append((mfma(cb, 0, xs, (ringbase + cb) % NRING, halo=True), [("X", 4)]))
    NM = len(mf)
    fill = [[] for _ in range(NM + 1)]
    early = [("X", 0, x_read(0, st, xs)), ("W", 0, w_read(0, st, 0, ringbase % NRING)), ("W", 0, w_read(0, st, 1, ringbase % NRING))]
    early += [("X", i, x_read(i, st, xs)) for i in (1, 2, 3)]
    for cb in range(1, TAIL):
        early += [("W", cb, w_read(cb, st, h, (ringbase + cb) % NRING)) for h in (0, 1)]
        if cb == 1: early += [("X", 4, x_read(4, st, xs))]
    for i, e in enumerate(early):
        fill[min(i, ntail - 1)].append(e)
    LASTB = P.get("lastb", 20 - TAIL - 3)
    rest = list(range(TAIL, 20))
    for idx, cb in enumerate(rest):
        ib = (idx * (LASTB + 1)) // len(rest)
        if cb - NRING >= 0: ib = max(ib, cb - NRING + 1)
        base = cbstart[ib]
        used = any(x[0] == "W" for x in fill[base + 1])
        cand = [base + 1, base + 3] if not used else [base, base + 2]
        fill[cand[0]].append(("W", cb, w_read(cb, st, 0, (ringbase + cb) % NRING)))
        fill[cand[1]].append(("W", cb, w_read(cb, st, 1, (ringbase + cb) % NRING)))
    ops = dma_ops(w, (st + 3) % 4, P)
    d0 = P.get("dma0", 2); d1 = P.get("dma1", NM - 8)
    for i, ins in enumerate(ops):
        pos = d0 + (i * (d1 - d0)) // len(ops)
        for kind, txt in ins:
            fill[max(pos - 1, 0) if kind == "m0" else pos].append(("S", 0, txt))
    for txt in soff_adv(w): fill[NM - 2].append(("S", 0, txt))
    lds = []; done = -1
    for i in range(NM):
        for e in fill[i]:
            a(e[2])
            if e[0] in "WX": lds.append((e[0], e[1]))
        txt, need = mf[i]
        if need:
            last = max(k for k, e in enumerate(lds) if e in need)
            if last > done:
                nw = len(lds) - 1 - last
                a(f"s_waitcnt lgkmcnt({min(nw, 15)})")
                done = last if nw <= 15 else len(lds) - 16
        a(txt)
    a(f"s_waitcnt vmcnt({2*n}) lgkmcnt(0)")
    a("s_barrier")

def kperm_code(a, dst, s, t):
    a(f"v_bfe_u32 {dst}, {s}, 2, 2")
    a(f"v_lshlrev_b32 {dst}, 3, {dst}")
    a(f"v_lshrrev_b32 {t}, 4, {s}")
    a(f"v_lshl_add_u32 {dst}, {t}, 2, {dst}")
    a(f"v_and_b32 {t}, 3, {s}")
    a(f"v_add_u32 {dst}, {dst}, {t}")

STG2 = 32768
ACC2 = 64
XA = [4, 20]
WB = [36, 128]
V2_D = 220
R_A = 228
R_B = 232
T2 = 240

def g2_xread(rho, st, sl, xs):
    hi = st >= 2
    off = (st - 2*hi) * STG2 + sl * 8192 + (rho & 1) * 1024
    d = XA[xs] + rho * 4
    return f"ds_read_b128 v[{d}:{d+3}], v{R_A + (rho >> 1) * 2 + hi} offset:{off}"
def g2_wread(cb, h, st, sl, xs):
    hi = st >= 2
    off = (st - 2*hi) * STG2 + sl * 8192 + h * 4096
    d = WB[xs] + cb * 4 + h * 2
    return f"ds_read_b64_tr_b16 v[{d}:{d+1}], v{R_B + cb * 2 + hi} offset:{off}"
def g2_mf(rho, cb, xs):
    c = ACC2 + (rho * 4 + cb) * 4
    return f"v_mfma_f32_16x16x32_bf16 v[{c}:{c+3}], v[{WB[xs]+cb*4}:{WB[xs]+cb*4+3}], v[{XA[xs]+rho*4}:{XA[xs]+rho*4+3}], v[{c}:{c+3}]"
def g2_dma(role, buf, P):
    ops = []
    for t in range(8):
        ins = []
        if t % 4 == 0: ins.append(("m0", f"s_add_u32 m0, s36, {buf*STG2 + t*1024}"))
        if role == "A":
            ins.append(("dma", f"buffer_load_dwordx4 v{V2_D + t//4}, s[8:11], s28 offen offset:{(t%4)*1024} {P.get('scl','sc1')} lds"))
        else:
            ins.append(("dma", f"buffer_load_dwordx4 v{V2_D + t}, s[12:15], s28 offen offset:{(t%4)*1024} lds"))
        ops.append(ins)
    return ops
def g2_adv(role): return ["s_add_u32 s28, s28, 262144"] if role == "A" else ["s_add_u32 s28, s28, 131072"]
G2_SWITCH = {"B": ["s_cmp_eq_u32 s31, 8", "s_cselect_b32 s12, s38, s12", "s_cselect_b32 s13, s39, s13",
                   "s_cselect_b32 s14, s40, s14", "s_cselect_b32 s28, 0, s28"],
             "A": ["s_cmp_eq_u32 s31, 8", "s_cselect_b32 s28, s38, s28"]}
ORD2 = [(rho, cb) for cb in range(4) for rho in range(4)]
def g2_reads(st, sl, xs):
    r = [("X", 0, g2_xread(0, st, sl, xs)), ("W", 0, g2_wread(0, 0, st, sl, xs)), ("W", 0, g2_wread(0, 1, st, sl, xs))]
    r += [("X", i, g2_xread(i, st, sl, xs)) for i in (1, 2, 3)]
    for cb in (1, 2, 3): r += [("W", cb, g2_wread(cb, h, st, sl, xs)) for h in (0, 1)]
    return r
def g2_segment(a, role, st, P, last=False):
    if last:
        for rho, cb in ORD2: a(g2_mf(rho, cb, 1))
        return
    fill = [[] for _ in range(33)]
    for part in range(2):
        rd = g2_reads(st, part, part)
        span = P.get("g2rspan", 10)
        for i, e in enumerate(rd): fill[part*16 + (i * span) // len(rd)].append(e + (part,))
    if st == 1:
        for t in G2_SWITCH[role]: fill[0].append(("S", 0, t, 0))
    ops = g2_dma(role, (st + 3) % 4, P)
    d0, d1 = P.get("g2d0", 2), P.get("g2d1", 30)
    for i, ins in enumerate(ops):
        pos = d0 + (i * (d1 - d0)) // len(ops)
        for kind, txt in ins: fill[pos - 1 if kind == "m0" else pos].append(("S", 0, txt, 0))
    for t in g2_adv(role): fill[31].append(("S", 0, t, 0))
    lds = []; done = -1
    for i in range(32):
        for e in fill[i]:
            a(e[2])
            if e[0] in "XW": lds.append((e[0], e[1], e[3]))
        rho, cb = ORD2[i % 16]
        if i >= 16:
            last_ = max(k for k, e in enumerate(lds) if e == ("X", rho, 0) or e == ("W", cb, 0))
            if last_ > done:
                n = len(lds) - 1 - last_
                a(f"s_waitcnt lgkmcnt({min(n,15)})")
                done = last_ if n <= 15 else len(lds) - 16
        a(g2_mf(rho, cb, 1 if i < 16 else 0))
    a("s_waitcnt vmcnt(16) lgkmcnt(0)")
    a("s_barrier")

def gen(a, P):
    KN = NAME + "_kernel"
    a.kernel(KN, (256,1,1), 256, 163840, vgpr=NV, agpr=224, sgpr=102)
    a.launch[-1] = "; @launch grid=(256,1,1) block=(256,1,1) lds=163840"
    scs = P.get("scs", "sc1"); scl = P.get("scl", "sc1")
    a("s_cmp_ge_u32 s2, 256")
    a("s_cbranch_scc1 L_end")
    a("s_load_dwordx16 s[64:79], s[0:1], 0")
    a("s_load_dwordx4 s[80:83], s[0:1], 64")
    if P.get("tl"): a("v_mov_b32 v255, 0")
    stamp(a, P, 0)
    for r_ in list(range(V_DMA, V_DMA + 10)) + [V_T + 11]: a(f"v_mov_b32 v{r_}, 0x7fffff00")
    a("v_and_b32 v1, 63, v0")
    a("v_lshrrev_b32 v2, 6, v0")
    a("s_and_b32 s33, s2, 7")
    a("s_lshl_b32 s33, s33, 2")
    a("s_bfe_u32 s34, s2, 0x20003")
    a("v_readfirstlane_b32 s32, v2")
    a("s_add_u32 s33, s33, s34")
    a("s_lshr_b32 s34, s2, 5")
    a("s_cmp_eq_u32 s34, 0")
    a("s_cselect_b32 s35, 0, 1024")
    a("s_lshl_b32 s42, s34, 14")
    a("s_sub_u32 s42, s42, s35")
    a("s_lshl_b32 s43, s33, 6")
    a("s_mul_i32 s44, s33, 224")
    a("s_mov_b32 s28, 0"); a("s_mov_b32 s29, 0"); a("s_mov_b32 s30, 0")
    a("s_and_b32 s45, s33, 1")
    a("s_lshl_b32 s46, s45, 1")
    a("s_movk_i32 s52, 5462"); a("s_movk_i32 s53, 4682"); a("s_movk_i32 s54, 6144"); a("s_movk_i32 s55, 7168")
    a("v_lshlrev_b32 v3, 4, v1")
    L = 76
    a("v_and_b32 v4, 7, v1")
    a("v_lshrrev_b32 v5, 3, v1")
    a("s_lshl_b32 s3, s2, 3")
    a("v_add_u32 v6, s3, v4")
    a("v_lshlrev_b32 v7, 11, v6")
    a("s_lshl_b32 s47, s32, 9")
    a("v_lshl_add_u32 v8, v5, 4, v7")
    a("v_add_u32 v8, s47, v8")
    a("v_mov_b32 v9, 0")
    a("s_waitcnt lgkmcnt(0)")
    srd(a, 24, P_X, 0, 4 << 20)
    srd(a, S_FL, P_WS, WS_FLAG, FLAG_BYTES)
    for i in range(4):
        a(f"buffer_load_dwordx4 v[{L+4*i}:{L+4*i+3}], v8, s[24:27], 0 offen offset:{128*i}")
    a(f"buffer_load_dword v10, v7, s[24:27], 0 offen")
    a(f"s_mov_b32 s47, {EP_OFF}")
    a(f"buffer_load_dword v11, v9, s[{S_FL}:{S_FL+3}], s47 offen {scl}")
    srd(a, 8, P_WS, "s42", 0); a(f"s_sub_u32 s10, {4<<20}, s42")
    srd(a, 12, P_QKV, "s43", 0); a(f"s_sub_u32 s14, {1024*6144}, s43")
    srd(a, 16, P_G, "s44", 0); a(f"s_sub_u32 s18, {1024*7168}, s44")
    srd(a, 20, P_U, "s44", 0); a(f"s_sub_u32 s22, {1024*7168}, s44")
    for w in range(1, 4):
        a(f"s_cmp_eq_u32 s32, {w}")
        a(f"s_cbranch_scc1 L_pre{w}")
    T = [f"v{V_T+i}" for i in range(8)]
    VPF = V_T + 11
    for w in range(4):
        a.label(f"L_pre{w}")
        if w >= 1:
            nl = 6 if w == 1 else 7
            pitch = 6144 if w == 1 else 7168
            src = {1: P_QKV, 2: P_G, 3: P_U}[w]
            srd(a, 92, src, 0, 1024*pitch)
            a(f"v_mul_u32_u24 {T[0]}, {(65536 + nl - 1)//nl}, v1")
            a(f"v_lshrrev_b32 {T[0]}, 16, {T[0]}")
            a(f"v_mul_u32_u24 {T[1]}, {nl}, {T[0]}")
            a(f"v_sub_u32 {T[1]}, v1, {T[1]}")
            a(f"v_lshlrev_b32 {T[2]}, 5, {T[0]}")
            a("s_lshr_b32 s47, s2, 3")
            a(f"v_add_u32 {T[2]}, s47, {T[2]}")
            a(f"v_mul_u32_u24 {T[2]}, s{54 if w == 1 else 55}, {T[2]}")
            a("s_and_b32 s47, s2, 7")
            if w == 1:
                a(f"v_lshrrev_b32 {T[3]}, 1, {T[1]}")
                a(f"v_lshl_add_u32 {T[2]}, {T[3]}, 11, {T[2]}")
                a(f"v_and_b32 {T[3]}, 1, {T[1]}")
                a(f"v_lshl_add_u32 {T[2]}, {T[3]}, 7, {T[2]}")
                a("s_lshl_b32 s47, s47, 8")
            else:
                a(f"v_lshl_add_u32 {T[2]}, {T[1]}, 7, {T[2]}")
                a("s_mul_i32 s47, s47, 896")
            a(f"v_add_u32 {T[2]}, s47, {T[2]}")
            PFP = P.get("pfp", 7)
            a(f"v_cmp_gt_u32 vcc, {PFP*nl}, v1")
            a(f"v_mov_b32 {T[3]}, 0x7fffff00")
            a(f"v_cndmask_b32 {T[4]}, {T[3]}, {T[2]}, vcc")
            a(f"v_cmp_gt_u32 vcc, {4*nl}, v1")
            a(f"buffer_load_dword v{V_T+8}, {T[4]}, s[92:95], 0 offen")
            a(f"v_cndmask_b32 v{VPF}, {T[3]}, {T[2]}, vcc")
            a(f"s_mov_b32 s59, {PFP*32*pitch}")
        else:
            srd(a, 92, P_D, 0, 3584*2048)
        vi = 0
        for g in dma_groups(w):
            for gi, s in enumerate(g):
                kind, idx = slot_info(s)
                d = f"v{V_DMA+vi}"
                if kind == "A":
                    if idx == 0: a(f"v_mov_b32 {d}, v3")
                    else:
                        a(f"s_add_u32 s47, s35, {(idx-1)*1024 - gi*1024}")
                        a(f"v_add_u32 {d}, s47, v3")
                elif kind == "Q":
                    a(f"v_add_u32 {T[0]}, {idx*64}, v1")
                    a(f"v_mul_u32_u24 {T[1]}, s52, {T[0]}")
                    a(f"v_lshrrev_b32 {T[1]}, 16, {T[1]}")
                    a(f"v_mul_u32_u24 {T[2]}, 12, {T[1]}")
                    a(f"v_sub_u32 {T[2]}, {T[0]}, {T[2]}")
                    kperm_code(a, T[3], T[1], T[4])
                    a(f"v_mul_u32_u24 {T[3]}, s54, {T[3]}")
                    a(f"v_lshrrev_b32 {T[4]}, 2, {T[2]}")
                    a(f"v_lshl_add_u32 {T[3]}, {T[4]}, 11, {T[3]}")
                    a(f"v_lshrrev_b32 {T[4]}, 1, {T[1]}")
                    a(f"v_xor_b32 {T[4]}, {T[4]}, {T[2]}")
                    a(f"v_and_b32 {T[4]}, 2, {T[4]}")
                    a(f"v_and_b32 {T[5]}, 1, {T[2]}")
                    a(f"v_or_b32 {T[4]}, {T[4]}, {T[5]}")
                    a(f"v_lshl_add_u32 {T[3]}, {T[4]}, 4, {T[3]}")
                    a(f"v_subrev_u32 {d}, {gi*1024}, {T[3]}")
                else:
                    a(f"v_add_u32 {T[0]}, {idx*64}, v1")
                    a(f"v_mul_u32_u24 {T[1]}, s53, {T[0]}")
                    a(f"v_lshrrev_b32 {T[1]}, 16, {T[1]}")
                    a(f"v_mul_u32_u24 {T[2]}, 14, {T[1]}")
                    a(f"v_sub_u32 {T[2]}, {T[0]}, {T[2]}")
                    a(f"v_add_u32 {T[2]}, s46, {T[2]}")
                    a(f"v_subrev_u32 {T[4]}, 14, {T[2]}")
                    a(f"v_min_u32 {T[2]}, {T[2]}, {T[4]}")
                    kperm_code(a, T[3], T[1], T[4])
                    a(f"v_mul_u32_u24 {T[3]}, s55, {T[3]}")
                    a(f"v_lshl_add_u32 {T[3]}, {T[2]}, 4, {T[3]}")
                    a(f"v_subrev_u32 {d}, {gi*1024}, {T[3]}")
                vi += 1
        a(f"v_add_u32 v{V_RX}, {(1+4*w)*1024}, v3")
        a(f"v_add_u32 v{V_RX+1}, {(1+4*w)*1024 + 2*STG}, v3")
        if w < 3: a("s_branch L_ln")
    a.label("L_ln")
    a(f"v_mov_b32 v{V_RH}, v3")
    a(f"v_add_u32 v{V_RH+1}, {2*STG}, v3")
    a(f"v_lshrrev_b32 {T[0]}, 2, v1")
    a(f"v_and_b32 {T[1]}, 3, v1")
    a(f"v_lshlrev_b32 {T[1]}, 3, {T[1]}")
    a(f"v_mul_u32_u24 {T[2]}, 192, {T[0]}")
    a(f"v_add_u32 {T[2]}, {T[2]}, {T[1]}")
    a(f"v_and_b32 {T[3]}, 16, v1")
    a(f"v_lshlrev_b32 {T[3]}, 1, {T[3]}")
    a(f"v_add_u32 v{V_RQ}, {T[2]}, {T[3]}")
    a(f"v_add_u32 v{V_RQ+1}, {2*STG}, v{V_RQ}")
    a(f"v_xor_b32 {T[3]}, 32, {T[3]}")
    a(f"v_add_u32 v{V_RQ+2}, {T[2]}, {T[3]}")
    a(f"v_add_u32 v{V_RQ+3}, {2*STG}, v{V_RQ+2}")
    a(f"v_mul_u32_u24 {T[2]}, 224, {T[0]}")
    a(f"v_add_u32 v{V_RG}, {T[2]}, {T[1]}")
    a(f"v_add_u32 v{V_RG}, {OFF_G}, v{V_RG}")
    a(f"v_add_u32 v{V_RG+1}, {2*STG}, v{V_RG}")
    a("s_mul_i32 s47, s2, 28672")
    a("s_lshl_b32 s56, s32, 13")
    a("s_add_u32 s47, s47, s56")
    a(f"v_lshlrev_b32 v{V_T+9}, 7, v1")
    a("s_lshl_b32 s56, s2, 13")
    a(f"v_add_u32 v{V_T+10}, s56, v{V_T+9}")
    a(f"v_add_u32 v{V_T+9}, s47, v{V_T+9}")
    for r_ in range(224): a(f"v_accvgpr_write_b32 a{r_}, 0")
    a("v_lshrrev_b32 v12, 2, v5")
    a("v_lshlrev_b32 v12, 17, v12")
    a("v_and_b32 v13, 3, v5")
    a("v_lshl_add_u32 v12, v13, 8, v12")
    a("v_lshrrev_b32 v13, 4, v6")
    a("v_lshl_add_u32 v12, v13, 10, v12")
    a("v_and_b32 v13, 15, v6")
    a("v_lshl_add_u32 v12, v13, 4, v12")
    a("s_lshl_b32 s47, s32, 20")
    a("v_add_u32 v12, s47, v12")
    srd(a, 48, P_WS, 0, 4 << 20)
    a("s_mov_b32 s56, 0x40000"); a("s_mov_b32 s57, 0x80000"); a("s_mov_b32 s58, 0xc0000")
    a("v_lshlrev_b32 v13, 5, v4")
    a(f"v_add_u32 v13, {XCH}, v13")
    a("s_lshl_b32 s47, s32, 3")
    a("v_add_u32 v14, s47, v13")
    a("s_waitcnt vmcnt(1)")
    a("s_cmp_lg_u32 s32, 0")
    a("s_cbranch_scc1 L_ln2")
    a("s_waitcnt vmcnt(0)")
    a.label("L_ln2")
    stamp(a, P, 1)
    a(f"v_readfirstlane_b32 s{S_EP}, v11")
    a("v_lshlrev_b32 v10, 16, v10")
    F = 92
    for k in range(16):
        a(f"v_lshlrev_b32 v{F+2*k}, 16, v{L+k}")
        a(f"v_and_b32 v{F+2*k+1}, 0xffff0000, v{L+k}")
    a(f"s_add_u32 s{S_EP}, s{S_EP}, 1")
    a(f"v_sub_f32 v16, v{F}, v10"); a(f"v_sub_f32 v17, v{F+1}, v10")
    a("v_mul_f32 v18, v16, v16"); a("v_mul_f32 v19, v17, v17")
    for k in range(2, 32, 2):
        a(f"v_sub_f32 v20, v{F+k}, v10"); a(f"v_sub_f32 v21, v{F+k+1}, v10")
        a("v_add_f32 v16, v16, v20"); a("v_add_f32 v17, v17, v21")
        a("v_fmac_f32 v18, v20, v20"); a("v_fmac_f32 v19, v21, v21")
    a("v_add_f32 v16, v16, v17"); a("v_add_f32 v17, v18, v19")
    a("s_nop 0")
    a("v_add_f32_dpp v16, v16, v16 row_ror:8 row_mask:0xf bank_mask:0xf")
    a("v_add_f32_dpp v17, v17, v17 row_ror:8 row_mask:0xf bank_mask:0xf")
    for op in ("v_permlane16_swap_b32", "v_permlane32_swap_b32"):
        a("v_mov_b32 v18, v16"); a("v_mov_b32 v19, v17")
        a("s_nop 1")
        a(f"{op} v16, v18"); a(f"{op} v17, v19")
        a("s_nop 1")
        a("v_add_f32 v16, v16, v18"); a("v_add_f32 v17, v17, v19")
    a("ds_write_b64 v14, v[16:17]")
    a("s_waitcnt lgkmcnt(0)")
    a("s_barrier")
    a("ds_read_b128 v[20:23], v13")
    a("ds_read_b128 v[24:27], v13 offset:16")
    a("s_waitcnt lgkmcnt(0)")
    a("v_add_f32 v16, v20, v22"); a("v_add_f32 v17, v21, v23")
    a("v_add_f32 v18, v24, v26"); a("v_add_f32 v19, v25, v27")
    a("v_add_f32 v16, v16, v18"); a("v_add_f32 v17, v17, v19")
    a(f"v_mul_f32 v16, {1.0/1024!r}, v16")
    a(f"v_mul_f32 v17, {1.0/1024!r}, v17")
    a("v_fma_f32 v17, -v16, v16, v17")
    a("v_max_f32 v17, 0, v17")
    a("v_add_f32 v16, v16, v10")
    bf16_round(a, "v17", "v17")
    a(f"v_add_f32 v17, {1e-5!r}, v17")
    bf16_round(a, "v17", "v17")
    a("v_sqrt_f32 v17, v17")
    bf16_round(a, "v16", "v16")
    bf16_round(a, "v17", "v17")
    a("v_rcp_f32 v17, v17")
    for i in range(4):
        for d in range(4):
            o = F + 2*(4*i+d)
            a(f"v_sub_f32 v{o}, v{o}, v16"); a(f"v_sub_f32 v{o+1}, v{o+1}, v16")
            a(f"v_cvt_pk_bf16_f32 v18, v{o}, v{o+1}")
            a(f"v_lshlrev_b32 v{o}, 16, v18"); a(f"v_and_b32 v{o+1}, 0xffff0000, v18")
            a(f"v_mul_f32 v{o}, v{o}, v17"); a(f"v_mul_f32 v{o+1}, v{o+1}, v17")
            a(f"v_cvt_pk_bf16_f32 v{L+4*i+d}, v{o}, v{o+1}")
        a(f"buffer_store_dwordx4 v[{L+4*i}:{L+4*i+3}], v12, s[48:51], {'0' if i == 0 else 's%d' % (55+i)} offen {scs}")
    a("s_lshl_b32 s47, s34, 5")
    a("s_sub_u32 s47, s47, 2")
    a("v_add_u32 v14, s47, v1")
    a("v_max_i32 v14, 0, v14")
    a("v_lshlrev_b32 v14, 7, v14")
    srd(a, 24, P_WS, WS_A2, A2_BYTES)
    a("s_lshl_b32 s47, s2, 7")
    stamp(a, P, 2)
    a("s_waitcnt vmcnt(0)")
    a("s_barrier")
    stamp(a, P, 3)
    a("s_cmp_lg_u32 s32, 3")
    a("s_cbranch_scc1 L_noflag1")
    flag_store(a, "s47", "v15", "v16", P)
    a.label("L_noflag1")
    for r_ in range(V_X[0], V_H + 4):
        if r_ != 14: a(f"v_mov_b32 v{r_}, 0")
    a("s_mov_b32 s31, 8")
    for w in range(1, 4):
        a(f"s_cmp_eq_u32 s32, {w}")
        a(f"s_cbranch_scc1 L_g1_w{w}")
    for w in range(4):
        a.label(f"L_g1_w{w}")
        if w < 2: poll(a, "v14", "v15", 34, P)
        stamp(a, P, 4)
        a("v_mov_b32 v14, 0"); a("v_mov_b32 v15, 0")
        for sl in range(3):
            for ins in dma_ops(w, sl, P):
                for kind, txt in ins:
                    a(txt)
                    if kind == "m0": a("s_nop 0")
            for txt in soff_adv(w): a(txt)
        n = len(dma_slots(w))
        a(f"s_waitcnt vmcnt({2*n})")
        a("s_barrier")
        stamp(a, P, 5)
        a(".p2align 6")
        a.label(f"L_g1_loop{w}")
        for st in range(4):
            if st == 0 and w >= 1:
                a(f"buffer_load_dword v{V_T+8}, v{VPF}, s[92:95], s59 offen")
                a(f"s_add_u32 s59, s59, {128*(6144 if w == 1 else 7168)}")
            g1_segment(a, w, st, P)
            if st == 0:
                a(f"s_cmp_lg_u32 s31, {P.get('pfit', 6)}")
                a(f"s_cbranch_scc1 L_g1_nopf{w}")
                srd(a, 48, P_D, 0, 3584*2048)
                a(f"buffer_load_dword v{V_T+8}, v{V_T+9}, s[48:51], 0 offen")
                if w == 3:
                    srd(a, 48, P_WO, 0, 1024*2048)
                    a(f"buffer_load_dword v{V_T+8}, v{V_T+10}, s[48:51], 0 offen")
                a.label(f"L_g1_nopf{w}")
        a("s_sub_u32 s31, s31, 1")
        a("s_cmp_lg_u32 s31, 0")
        a(f"s_cbranch_scc1 L_g1_loop{w}")
        g1_segment(a, w, 0, P, last_tail=True)
        if w < 3: a("s_branch L_g1_epi")
    a.label("L_g1_epi")
    stamp(a, P, 6)
    epilogue_g1(a, P)
    g2_phase(a, P)
    if P.get("tl"):
        a("s_waitcnt vmcnt(0)")
        stamp(a, P, 15)
        srd(a, 92, P_WS, WS_TL, 65536)
        a("s_lshl_b32 s47, s2, 8")
        a("s_lshl_b32 s48, s32, 6")
        a("s_add_u32 s47, s47, s48")
        a("v_lshlrev_b32 v12, 2, v1")
        a("s_mov_b64 exec, 0xffff")
        a("buffer_store_dword v255, v12, s[92:95], s47 offen")
    a.label("L_end")
    a("s_endpgm")

def g2_setup(a, P):
    a("s_and_b32 s60, s2, 1")
    a("s_bfe_u32 s61, s2, 0x20001"); a("s_lshl_b32 s61, s61, 2")
    a("s_bfe_u32 s47, s2, 0x20003"); a("s_add_u32 s61, s61, s47")
    a("s_lshr_b32 s62, s2, 5")
    a("s_lshl_b32 s63, s62, 8")
    a("s_lshl_b32 s47, s61, 13")
    a(f"s_add_u32 s47, s47, {WS_A2}")
    srd(a, 8, P_WS, "s47", 0)
    a("s_mul_i32 s10, s60, 56"); a("s_add_u32 s10, s10, 88"); a("s_lshl_b32 s10, s10, 17")
    a("s_lshl_b32 s41, s61, 13"); a("s_sub_u32 s10, s10, s41")
    a("s_lshl_b32 s47, s60, 20"); a("s_add_u32 s47, s47, s63")
    srd(a, 12, P_WO, "s47", 0); a(f"s_sub_u32 s14, {512*2048}, s63")
    a(f"s_mul_i32 s47, s60, {1792*2048}"); a("s_add_u32 s47, s47, s63")
    a(f"s_add_u32 s4, s{P_D}, s47"); a(f"s_addc_u32 s39, s{P_D+1}, 0"); a("s_and_b32 s39, s39, 0xffff")
    a(f"s_sub_u32 s40, {1792*2048}, s63")
    a("s_mul_i32 s5, s60, 56"); a("s_add_u32 s5, s5, 32"); a("s_lshl_b32 s5, s5, 17")
    a("s_lshl_b32 s6, s60, 21")
    a("s_cmp_lt_u32 s32, 2")
    a("s_cselect_b32 s38, s5, s4")
    a("s_cselect_b32 s28, s6, 0")
    a("s_lshl_b32 s36, s32, 13")
    a("s_and_b32 s47, s32, 1")
    a("s_lshl_b32 s41, s47, 17")
    a("s_lshl_b32 s47, s47, 5")
    a(f"v_lshrrev_b32 v{T2}, 4, v1")
    a(f"v_bfe_u32 v{T2+1}, v1, 1, 3")
    a(f"v_and_b32 v{T2+2}, 1, v1")
    for t in range(8):
        a(f"v_add_u32 v{T2+3}, {4*t}, v{T2}")
        a(f"v_and_b32 v{T2+4}, 7, v{T2+3}")
        a(f"v_xor_b32 v{T2+4}, v{T2+4}, v{T2+1}")
        a(f"v_lshl_or_b32 v{T2+4}, v{T2+4}, 1, v{T2+2}")
        a(f"v_add_u32 v{T2+3}, s47, v{T2+3}")
        a(f"v_lshlrev_b32 v{T2+3}, 11, v{T2+3}")
        a(f"v_lshl_add_u32 v{T2+3}, v{T2+4}, 4, v{T2+3}")
        a(f"v_subrev_u32 v{V2_D+t}, {1024*(t%4)}, v{T2+3}")
    a("s_cmp_ge_u32 s32, 2")
    a("s_cbranch_scc1 L_g2_brole")
    a(f"v_add_u32 v{V2_D}, s41, v3")
    a(f"v_add_u32 v{V2_D+1}, 4096, v{V2_D}")
    a("s_branch L_g2_setup2")
    a.label("L_g2_brole")
    for sl in range(3):
        for ins in g2_dma("B", sl, P):
            for kind, txt in ins:
                a(txt)
                if kind == "m0": a("s_nop 0")
        for t in g2_adv("B"): a(t)
    a.label("L_g2_setup2")
    a("s_lshr_b32 s47, s32, 1"); a("s_lshl_b32 s47, s47, 12")
    a("s_lshl_b32 s41, s60, 11")
    a("s_add_u32 s4, s47, s41")
    a("s_xor_b32 s41, s41, 2048")
    a("s_add_u32 s5, s47, s41")
    a(f"v_add_u32 v{R_A}, s4, v3"); a(f"v_add_u32 v{R_A+1}, {2*STG2}, v{R_A}")
    a(f"v_add_u32 v{R_A+2}, s5, v3"); a(f"v_add_u32 v{R_A+3}, {2*STG2}, v{R_A+2}")
    a(f"v_lshrrev_b32 v{T2}, 2, v1")
    a(f"v_and_b32 v{T2+1}, 7, v{T2}")
    a(f"v_and_b32 v{T2+2}, 3, v1")
    a(f"v_lshlrev_b32 v{T2+2}, 3, v{T2+2}")
    a(f"v_lshl_add_u32 v{T2+2}, v{T2}, 8, v{T2+2}")
    a(f"v_add_u32 v{T2+2}, 16384, v{T2+2}")
    a("s_and_b32 s47, s32, 1"); a("s_lshl_b32 s47, s47, 2")
    for cb in range(4):
        a(f"s_add_u32 s41, s47, {cb}")
        a(f"v_xor_b32 v{T2+3}, s41, v{T2+1}")
        a(f"v_lshl_add_u32 v{R_B+2*cb}, v{T2+3}, 5, v{T2+2}")
        a(f"v_add_u32 v{R_B+2*cb+1}, {2*STG2}, v{R_B+2*cb}")
    a(f"v_lshrrev_b32 v{T2}, 1, v1")
    a("s_lshl_b32 s47, s60, 4")
    a(f"v_add_u32 v{T2}, s47, v{T2}")
    a(f"v_and_b32 v{T2+1}, 3, v{T2}")
    a(f"v_lshrrev_b32 v{T2+2}, 2, v{T2}")
    a(f"v_lshl_add_u32 v{T2+1}, v{T2+1}, 3, v{T2+2}")
    a("s_lshr_b32 s47, s61, 1"); a("s_lshl_b32 s47, s47, 5")
    a(f"v_add_u32 v{T2+1}, s47, v{T2+1}")
    a(f"v_and_b32 v{T2+2}, 1, v1")
    a(f"v_lshl_add_u32 v{T2+1}, v{T2+1}, 2, v{T2+2}")
    a("s_and_b32 s47, s61, 1"); a("s_lshl_b32 s47, s47, 1")
    a(f"v_add_u32 v{T2+1}, s47, v{T2+1}")
    a(f"v_lshlrev_b32 v{T2+1}, 7, v{T2+1}")
    a(f"v_add_u32 v{T2+5}, {F2_OFF}, v{T2+1}")

def epilogue_g1(a, P):
    scs = P.get("scs", "sc1")
    KP = 4; VP0 = 24; VP1 = 34; QP = 44; HP = 60; B = 64; SH = 70; ONES = 72
    T = 196
    a("s_nop 7")
    def pack(dst, src):
        a(f"v_cvt_pk_bf16_f32 v{dst}, v{src}, v{src+1}")
        a(f"v_cvt_pk_bf16_f32 v{dst+1}, v{src+2}, v{src+3}")
    for tb in (3, 0, 1, 2):
        pack(KP + (tb+1)*4, V_K + (tb*2)*4); pack(KP + (tb+1)*4 + 2, V_K + (tb*2+1)*4)
        pack(VP0 + (tb+1)*2, V_V + (tb*2)*4); pack(VP1 + (tb+1)*2, V_V + (tb*2+1)*4)
        if tb == 3:
            pack(HP, V_H)
            a("s_lshl_b32 s47, s32, 11")
            a(f"s_add_u32 s47, s47, {XCH + 2048}")
            a(f"v_add_u32 v{T}, s47, v3")
            a(f"v_lshrrev_b32 v{T+1}, 1, v3")
            a(f"v_add_u32 v{T+2}, s47, v{T+1}")
            a(f"ds_write_b128 v{T}, v[{KP+16}:{KP+19}]")
            a(f"ds_write_b64 v{T+2}, v[{VP0+8}:{VP0+9}] offset:1024")
            a(f"ds_write_b64 v{T+2}, v[{VP1+8}:{VP1+9}] offset:1536")
            a("s_lshl_b32 s57, s32, 3")
            a("s_lshl_b32 s58, s32, 9")
            a("s_cmp_lt_u32 s32, 2")
            a("s_cselect_b32 s56, 4, 3")
            a("s_cselect_b32 s57, s57, s58")
            a(f"s_add_u32 s57, s57, {XCH}")
            a(f"v_lshlrev_b32 v{T+3}, s56, v1")
            a(f"v_add_u32 v{T+3}, s57, v{T+3}")
            a(f"ds_write_b64 v{T+3}, v[{HP}:{HP+1}]")
    for tb in range(4):
        pack(QP + tb*4, V_Q + (tb*2)*4); pack(QP + tb*4 + 2, V_Q + (tb*2+1)*4)
    NEG = "0xf149f2ca"
    a(f"v_and_b32 v{T}, 15, v1")
    a(f"v_lshrrev_b32 v{T+1}, 4, v1")
    a(f"v_lshlrev_b32 v{T+1}, 2, v{T+1}")
    a(f"v_and_b32 v{T+2}, 1, v1")
    a(f"v_lshlrev_b32 v{SH}, 4, v{T+2}")
    a(f"v_add_u32 v{T+1}, v{T+1}, v{T+2}")
    a(f"v_add_u32 v{T+3}, 2, v{T+1}")
    a(f"v_add_u32 v{T+4}, 2, v{T}")
    a(f"v_mov_b32 v{T+5}, {NEG}")
    a(f"v_cmp_eq_u32 s[56:57], 1, v{T+2}")
    for aa in range(2):
        j = T+1 if aa == 0 else T+3
        a(f"v_cmp_le_u32 vcc, v{j}, v{T}")
        a("s_nop 1")
        a(f"v_cndmask_b32 v{B+aa}, v{T+5}, 0, vcc")
        a(f"v_cmp_ge_u32 vcc, v{j}, v{T+4}")
        a("s_nop 1")
        a(f"v_cndmask_b32 v{B+2+aa}, v{T+5}, 0, vcc")
    a("s_or_b32 s47, s34, s32")
    a("s_cmp_eq_u32 s47, 0")
    a("s_cselect_b64 vcc, -1, 0")
    a(f"v_cndmask_b32 v{B+4}, v{B+2}, v{T+5}, vcc")
    a(f"v_cndmask_b32 v{B+5}, v{B+3}, v{T+5}, vcc")
    for i in range(4): a(f"v_mov_b32 v{ONES+i}, 0x3f803f80")
    a("s_lshl_b32 s47, s34, 14")
    a("s_lshl_b32 s58, s32, 12")
    a("s_add_u32 s47, s47, s58")
    VS = T+6
    a(f"v_add_u32 v{VS}, s47, v3")
    a("s_lshl_b32 s58, s45, 3")
    a(f"v_add_u32 v{VS+1}, s58, v{VS}")
    a("s_lshl_b32 s48, s33, 17")
    a("s_mul_i32 s49, s33, 7"); a("s_add_u32 s49, s49, 1"); a("s_lshr_b32 s49, s49, 1"); a("s_add_u32 s49, s49, 32"); a("s_lshl_b32 s49, s49, 17")
    a("s_add_u32 s50, s49, 0x20000")
    a("s_add_u32 s51, s49, 0x40000")
    a("s_lshr_b32 s52, s33, 1"); a("s_mul_i32 s52, s52, 7"); a("s_add_u32 s52, s52, 35"); a("s_lshl_b32 s52, s52, 17")
    a("s_waitcnt vmcnt(0) lgkmcnt(0)")
    a("s_barrier")
    a("s_lshl_b32 s47, s32, 11")
    a(f"s_add_u32 s47, s47, {XCH}")
    a(f"v_add_u32 v{T}, s47, v3")
    a(f"v_lshrrev_b32 v{T+1}, 1, v3")
    a(f"v_add_u32 v{T+2}, s47, v{T+1}")
    a(f"ds_read_b128 v[{KP}:{KP+3}], v{T}")
    a(f"ds_read_b64 v[{VP0}:{VP0+1}], v{T+2} offset:1024")
    a(f"ds_read_b64 v[{VP1}:{VP1+1}], v{T+2} offset:1536")
    G = 76
    def glu(j, tb, dst, tmp):
        ng = ((j*2)*4 + tb)*4; nu = ((j*2+1)*4 + tb)*4
        for r_ in range(4):
            a(f"v_accvgpr_read_b32 v{tmp+r_}, a{ng+r_}")
            a(f"v_accvgpr_read_b32 v{tmp+4+r_}, a{nu+r_}")
        a(f"v_pk_mul_f32 v[{tmp}:{tmp+1}], v[{tmp}:{tmp+1}], v[{tmp+4}:{tmp+5}]")
        a(f"v_pk_mul_f32 v[{tmp+2}:{tmp+3}], v[{tmp+2}:{tmp+3}], v[{tmp+6}:{tmp+7}]")
        pack(dst, tmp)
    cnt = 0
    for jp in range(3):
        for tb in range(4):
            o = G + 16 + (cnt % 4)*4
            glu(2*jp, tb, o, G); glu(2*jp+1, tb, o+2, G+8)
            a(f"buffer_store_dwordx4 v[{o}:{o+3}], v{VS}, s[24:27], s{49+jp} offen offset:{tb*1024} {scs}")
            cnt += 1
    for tb in range(4):
        o = G + 16 + (cnt % 4)*4
        glu(6, tb, o, G)
        a(f"buffer_store_dwordx2 v[{o}:{o+1}], v{VS+1}, s[24:27], s52 offen offset:{tb*1024} {scs}")
        cnt += 1
    a("s_waitcnt lgkmcnt(0)")
    S = 112
    U = lambda tb: S + tb*16
    C = (32 ** -0.5) * math.log2(math.e)
    a(f"s_mov_b32 s47, {hex(f32bits(C))}")
    for tb in range(4):
        u = U(tb)
        a(f"v_mfma_f32_16x16x32_bf16 v[{u}:{u+3}], v[{KP+tb*4}:{KP+tb*4+3}], v[{QP+tb*4}:{QP+tb*4+3}], 0")
        a(f"v_mfma_f32_16x16x32_bf16 v[{u+4}:{u+7}], v[{KP+tb*4+4}:{KP+tb*4+7}], v[{QP+tb*4}:{QP+tb*4+3}], 0")
    a("s_nop 2")
    for tb in range(4):
        u = U(tb)
        for k in range(4): a(f"v_cndmask_b32 v{u+8+k}, v{u+2*k}, v{u+2*k+1}, s[56:57]")
        pb = B+4 if tb == 0 else B+2
        a(f"v_fma_f32 v{u+8}, v{u+8}, s47, v{pb}")
        a(f"v_fma_f32 v{u+9}, v{u+9}, s47, v{pb+1}")
        a(f"v_fma_f32 v{u+10}, v{u+10}, s47, v{B}")
        a(f"v_fma_f32 v{u+11}, v{u+11}, s47, v{B+1}")
        a(f"v_max3_f32 v{u+12}, v{u+8}, v{u+9}, v{u+10}")
        a(f"v_max_f32 v{u+12}, v{u+12}, v{u+11}")
        a(f"v_mov_b32 v{u+13}, v{u+12}")
    for op in ("v_permlane32_swap_b32", "v_permlane16_swap_b32"):
        a("s_nop 1")
        for tb in range(4): a(f"{op} v{U(tb)+12}, v{U(tb)+13}")
        a("s_nop 1")
        for tb in range(4): a(f"v_max_f32 v{U(tb)+12}, v{U(tb)+12}, v{U(tb)+13}")
        if op.startswith("v_permlane32"):
            for tb in range(4): a(f"v_mov_b32 v{U(tb)+13}, v{U(tb)+12}")
    for tb in range(4):
        u = U(tb)
        for k in range(4): a(f"v_sub_f32 v{u+8+k}, v{u+8+k}, v{u+12}")
        for k in range(4): a(f"v_exp_f32 v{u+8+k}, v{u+8+k}")
        a("s_nop 0")
        for k in range(4): a(f"v_cvt_pk_bf16_f32 v{u+8+k}, v{u+8+k}, 0")
        for k in range(4): a(f"v_lshlrev_b32 v{u+8+k}, v{SH}, v{u+8+k}")
    a("s_nop 1")
    for tb in range(4):
        u = U(tb)
        a(f"v_mfma_f32_16x16x32_bf16 v[{u}:{u+3}], v[{VP0+tb*2}:{VP0+tb*2+3}], v[{u+8}:{u+11}], 0")
        a(f"v_mfma_f32_16x16x32_bf16 v[{u+4}:{u+7}], v[{VP1+tb*2}:{VP1+tb*2+3}], v[{u+8}:{u+11}], 0")
        a(f"v_mfma_f32_16x16x32_bf16 v[{u+12}:{u+15}], v[{ONES}:{ONES+3}], v[{u+8}:{u+11}], 0")
    for tb in range(4):
        u = U(tb)
        a(f"v_rcp_f32 v{u+12}, v{u+12}")
        a("s_nop 0")
        for k in range(8): a(f"v_mul_f32 v{u+k}, v{u+k}, v{u+12}")
        pack(u+8, u); pack(u+10, u+4)
        a(f"buffer_store_dwordx4 v[{u+8}:{u+11}], v{VS}, s[24:27], s48 offen offset:{tb*1024} {scs}")
    g2_setup_part = True
    a("s_lshl_b32 s37, s2, 2"); a("s_add_u32 s37, s37, s32"); a("s_lshl_b32 s37, s37, 7")
    a(f"s_add_u32 s53, s37, {F2_OFF}")

def g2_phase(a, P):
    scs = P.get("scs", "sc1"); scl = P.get("scl", "sc1")
    stamp(a, P, 7)
    a("s_waitcnt vmcnt(0)")
    stamp(a, P, 8)
    flag_store(a, "s53", f"v{T2}", f"v{T2+1}", P)
    g2_setup(a, P)
    for r_ in list(range(4, 52)) + list(range(64, 144)): a(f"v_mov_b32 v{r_}, 0")
    a("s_mov_b32 s31, 9")
    a("s_cmp_ge_u32 s32, 2")
    a("s_cbranch_scc1 L_g2_B")
    for role in ("A", "B"):
        if role == "B": a.label("L_g2_B")
        if role == "A":
            poll(a, f"v{T2+5}", f"v{T2+6}", 32, P)
            stamp(a, P, 9)
            for sl in range(3):
                for ins in g2_dma("A", sl, P):
                    for kind, txt in ins:
                        a(txt)
                        if kind == "m0": a("s_nop 0")
                for t in g2_adv("A"): a(t)
        a("s_waitcnt vmcnt(16)")
        a("s_barrier")
        stamp(a, P, 10)
        a(".p2align 6")
        a.label(f"L_g2_loop{role}")
        for st in range(4): g2_segment(a, role, st, P)
        a("s_sub_u32 s31, s31, 1")
        a("s_cmp_lg_u32 s31, 0")
        a(f"s_cbranch_scc1 L_g2_loop{role}")
        if role == "A": a("s_branch L_g2_fin")
    a.label("L_g2_fin")
    g2_segment(a, "A", 0, P, last=True)
    stamp(a, P, 11)
    T = T2
    srd(a, 16, P_WS, WS_PART, 8 << 20)
    srd(a, 24, P_X, 0, 4 << 20)
    srd(a, 20, P_OUT, 0, 4 << 20)
    a("s_lshl_b32 s52, s61, 7")
    a("s_lshr_b32 s53, s32, 1"); a("s_lshl_b32 s53, s53, 6"); a("s_add_u32 s52, s52, s53")
    a("s_lshl_b32 s53, s60, 5"); a("s_add_u32 s52, s52, s53")
    a("s_lshl_b32 s52, s52, 11")
    a("s_and_b32 s53, s32, 1"); a("s_lshl_b32 s53, s53, 7"); a("s_add_u32 s53, s53, s63")
    a("s_add_u32 s52, s52, s53")
    a("s_lshl_b32 s55, s2, 15"); a("s_lshl_b32 s56, s32, 13"); a("s_add_u32 s55, s55, s56")
    a("s_add_u32 s57, s55, 4096")
    for b in range(8):
        c = ACC2 + (8 + b) * 4
        a(f"buffer_store_dwordx4 v[{c}:{c+3}], v3, s[16:19], {'s55' if b < 4 else 's57'} offen offset:{(b%4)*1024} {scs}")
    a(f"v_and_b32 v{T}, 15, v1"); a(f"v_lshlrev_b32 v{T}, 11, v{T}")
    a(f"v_and_b32 v{T+1}, 16, v1"); a(f"v_lshl_add_u32 v{T}, v{T+1}, 1, v{T}")
    a(f"v_and_b32 v{T+1}, 32, v1"); a(f"v_lshrrev_b32 v{T+1}, 1, v{T+1}"); a(f"v_add_u32 v{T}, v{T}, v{T+1}")
    a(f"v_add_u32 v{T}, s52, v{T}")
    a("s_mov_b32 s54, 32768")
    for rho in range(2):
        for pr in range(2):
            d = 4 + (rho*2+pr)*4
            a(f"buffer_load_dwordx4 v[{d}:{d+3}], v{T}, s[24:27], {'s54' if rho else '0'} offen offset:{pr*64}")
    a(f"s_add_u32 s53, s37, {F3_OFF}")
    a("s_xor_b32 s58, s53, 512")
    a(f"v_mov_b32 v{T+5}, s58")
    a("s_waitcnt vmcnt(4)")
    stamp(a, P, 12)
    flag_store(a, "s53", f"v{T+1}", f"v{T+2}", P)
    poll(a, f"v{T+5}", f"v{T+6}", 1, P)
    stamp(a, P, 13)
    a("s_xor_b32 s55, s55, 32768"); a("s_xor_b32 s57, s57, 32768")
    for b in range(8):
        c = ACC2 + (8 + b) * 4
        a(f"buffer_load_dwordx4 v[{c}:{c+3}], v3, s[16:19], {'s55' if b < 4 else 's57'} offen offset:{(b%4)*1024} {scl}")
    for rho in range(2):
        for pr in range(2):
            i = rho*2+pr
            a(f"s_waitcnt vmcnt({6 - i})")
            c0 = ACC2 + (rho*4 + pr*2)*4; c1 = c0 + 4
            p0 = ACC2 + (8 + rho*4 + pr*2)*4
            for k in range(0, 8, 2): a(f"v_pk_add_f32 v[{c0+k}:{c0+k+1}], v[{c0+k}:{c0+k+1}], v[{p0+k}:{p0+k+1}]")
            a("s_nop 1")
            for k in range(4): a(f"v_permlane16_swap_b32 v{c0+k}, v{c1+k}")
            xd = 4 + i*4
            for k in range(4):
                a(f"v_lshlrev_b32 v{T+2}, 16, v{xd+k}")
                a(f"v_and_b32 v{T+3}, 0xffff0000, v{xd+k}")
                a(f"v_pk_add_f32 v[{c0+2*k}:{c0+2*k+1}], v[{c0+2*k}:{c0+2*k+1}], v[{T+2}:{T+3}]")
                a(f"v_cvt_pk_bf16_f32 v{xd+k}, v{c0+2*k}, v{c0+2*k+1}")
            a(f"buffer_store_dwordx4 v[{xd}:{xd+3}], v{T}, s[20:23], {'s54' if rho else '0'} offen offset:{pr*64}")
    stamp(a, P, 14)
    a("s_or_b32 s47, s2, s32")
    a("s_cmp_lg_u32 s47, 0")
    a("s_cbranch_scc1 L_noep")
    a(f"v_lshlrev_b32 v{T+5}, 7, v1")
    for k in range(4):
        a(f"v_add_u32 v{T+7}, {k*8192}, v{T+5}")
        poll(a, f"v{T+7}", f"v{T+6}", 64, P)
    a(f"s_mov_b32 s53, {EP_OFF}")
    flag_store(a, "s53", f"v{T+1}", f"v{T+2}", P)
    a.label("L_noep")

if __name__ == "__main__":
    out = sys.argv[1]
    P = json.loads(sys.argv[2]) if len(sys.argv) > 2 else {}
    a = Asm()
    gen(a, P)
    hdr = "".join(open("cdna_kernels/" + NAME + ".s.ref").readlines()[:11])
    open(out, "w").write(a.text(hdr))
```

```python
import sys, math, struct, json
from asmlib import *

def f32bits(x): return struct.unpack("<I", struct.pack("<f", x))[0]

WS_A2 = 4 << 20
A2_BYTES = 144 * 128 * 1024
WS_PART = 24 << 20
WS_FLAG = 40 << 20
F1_OFF, F2_OFF, F3_OFF, EP_OFF = 0, 0x1000, 0x10000, 0x30000
FLAG_BYTES = 0x30080
WS_TL = 48 << 20
BIG = "0x7fffff00"

P_X, P_QKV, P_WO, P_BX, P_G, P_U, P_D, P_OUT, P_DBG, P_WS = 64, 66, 68, 70, 72, 74, 76, 78, 80, 82
S_EP = 96
S_FL = 84

def srd(a, d, p, off, nbytes):
    if off == 0:
        a(f"s_mov_b32 s{d}, s{p}"); a(f"s_and_b32 s{d+1}, s{p+1}, 0xffff")
    else:
        a(f"s_add_u32 s{d}, s{p}, {off}"); a(f"s_addc_u32 s{d+1}, s{p+1}, 0"); a(f"s_and_b32 s{d+1}, s{d+1}, 0xffff")
    a(f"s_mov_b32 s{d+2}, {nbytes}"); a(f"s_mov_b32 s{d+3}, 0x00020000")

def bf16_round(a, dst, src):
    a(f"v_cvt_pk_bf16_f32 {dst}, {src}, {src}")
    a(f"v_lshlrev_b32 {dst}, 16, {dst}")

_pid = [0]
def set_exec(a, nl):
    if nl <= 32: a(f"s_mov_b64 exec, {hex((1 << nl) - 1)}")
    else:
        a("s_mov_b32 exec_lo, -1"); a(f"s_mov_b32 exec_hi, {hex((1 << (nl - 32)) - 1)}")
def poll(a, vaddr, vt, nl, P, depth=None):
    i = _pid[0]; _pid[0] += 1
    D = depth or P.get("pd", 3)
    ld = lambda k: a(f"buffer_load_dword v{vt+k}, v{vaddr}, s[{S_FL}:{S_FL+3}], 0 offen sc1")
    set_exec(a, nl)
    a("s_mov_b32 s47, 0x20000")
    for k in range(D):
        ld(k)
        if k < D - 1: a(f"s_sleep {P.get('psl', 6)}")
    a.label(f"L_poll{i}")
    for k in range(D):
        a(f"s_waitcnt vmcnt({D-1})")
        a(f"v_cmp_ne_u32 vcc, s{S_EP}, v{vt+k}")
        a("s_nop 4")
        a(f"s_cbranch_vccz L_pollok{i}")
        ld(k)
    a("s_sub_u32 s47, s47, 1")
    a("s_cmp_lg_u32 s47, 0")
    a(f"s_cbranch_scc1 L_poll{i}")
    a("s_branch L_end")
    a.label(f"L_pollok{i}")
    a("s_mov_b64 exec, -1")

def flag_store(a, soff, vz, ve):
    a(f"v_mov_b32 {vz}, 0"); a(f"v_mov_b32 {ve}, s{S_EP}")
    a("s_mov_b64 exec, 1")
    a(f"buffer_store_dword {ve}, {vz}, s[{S_FL}:{S_FL+3}], {soff} offen sc1")
    a("s_mov_b64 exec, -1")

def stamp(a, P, i):
    if P.get("tl"):
        a("s_memrealtime s[88:89]")
        a("s_waitcnt lgkmcnt(0)")
        a(f"v_writelane_b32 v255, s88, {i}")

STG = 37888
OFF_Q = 17408
OFF_G = OFF_Q + 6144
XCH = 4 * STG
NRING = 8
A_X = [112, 132]
A_W = 152
A_UP = 184
NA = 232
V_Q, V_K, V_V, V_H, V_UP = 4, 36, 68, 100, 104
V_DMA, V_RX, V_RH, V_RQ, V_RG, V_T = 168, 178, 180, 182, 186, 188
V_E = 202
NV = 256
NUPV = 4

def dma_slots(w): return list(range(*[(0,9),(9,17),(17,27),(27,37)][w]))
def slot_info(s):
    if s < 17: return ("A", s)
    if s < 23: return ("Q", s-17)
    if s < 30: return ("G", s-23)
    return ("U", s-30)
def dma_groups(w):
    sl = dma_slots(w)
    if w == 0: return [[0], [1,2,3,4], [5,6,7,8]]
    return [sl[i:i+4] for i in range(0, len(sl), 4)]
CBS = [(t,j) for j in range(7) for t in ("g","u")] + [("k",0),("k",1),("v",0),("v",1),("q",0),("q",1)]
HALO0 = 14
def rr(p, n): return f"{p}[{n}:{n+3}]"
def acc_reg(cb, tb):
    t, j = CBS[cb]
    if t == "q": return rr("v", V_Q+(tb*2+j)*4)
    if t == "k": return rr("v", V_K+(tb*2+j)*4)
    if t == "v": return rr("v", V_V+(tb*2+j)*4)
    if t == "g": return rr("a", (j*4+tb)*4)
    if j < NUPV: return rr("v", V_UP+(j*4+tb)*4)
    return rr("a", A_UP+((j-NUPV)*4+tb)*4)
def w_read(cb, st, h, slot):
    t, j = CBS[cb]
    hi = st >= 2
    stoff = (st - 2*hi) * STG
    d = A_W + slot*4 + h*2
    if t in "qkv":
        base = V_RQ + 2*j + hi
        off = stoff + OFF_Q + h*3072 + "qkv".index(t)*64
    else:
        base = V_RG + hi
        off = stoff + (0 if t == "g" else 7168) + h*3584 + j*32
    assert off < 65536
    return f"ds_read_b64_tr_b16 a[{d}:{d+1}], v{base} offset:{off}"
def x_read(i, st, xs):
    hi = st >= 2
    stoff = (st - 2*hi) * STG
    d = A_X[xs] + i*4
    if i < 4: return f"ds_read_b128 a[{d}:{d+3}], v{V_RX+hi} offset:{stoff + i*1024}"
    return f"ds_read_b128 a[{d}:{d+3}], v{V_RH+hi} offset:{stoff}"
def mfma(cb, tb, xs, slot, halo=False):
    t, j = CBS[cb]
    wv = rr("a", A_W+slot*4)
    xv = rr("a", A_X[xs]+(4 if halo else tb)*4)
    acc = rr("v", V_H) if halo else acc_reg(cb, tb)
    if t == "v": return f"v_mfma_f32_16x16x32_bf16 {acc}, {xv}, {wv}, {acc}"
    return f"v_mfma_f32_16x16x32_bf16 {acc}, {wv}, {xv}, {acc}"
SRDN = {"A": 8, "Q": 12, "G": 16, "U": 20}
SOFF = {"A": 28, "Q": 29, "G": 30, "U": 30}
def dma_ops(w, buf):
    ops = []; vi = 0
    for g in dma_groups(w):
        for gi, s in enumerate(g):
            kind, _ = slot_info(s)
            ins = []
            if gi == 0: ins.append(("m0", f"s_mov_b32 m0, {buf*STG + g[0]*1024}"))
            sc = "sc1 " if kind == "A" else ""
            ins.append(("dma", f"buffer_load_dwordx4 v{V_DMA+vi}, s[{SRDN[kind]}:{SRDN[kind]+3}], s{SOFF[kind]} offen offset:{gi*1024} {sc}lds"))
            ops.append(ins); vi += 1
    return ops
def soff_adv(w):
    kinds = sorted(set(SOFF[slot_info(s)[0]] for s in dma_slots(w)))
    inc = {28: 131072, 29: 32*6144, 30: 32*7168}
    return [f"s_add_u32 s{k}, s{k}, {inc[k]}" for k in kinds]

def emit_sched(a, mf, fill, side=None, rate=2):
    lds = []; done = -1
    side = list(side or [])
    for i, (txt, need) in enumerate(mf):
        nf = 0
        for e in fill[i]:
            a(e[2]); nf += 1
            if e[0] in "WX": lds.append((e[0], e[1]))
        if need:
            last = max(k for k, e in enumerate(lds) if e in need)
            if last > done:
                nw = len(lds) - 1 - last
                a(f"s_waitcnt lgkmcnt({min(nw, 15)})"); nf += 1
                done = last if nw <= 15 else len(lds) - 16
        while side and side[0][0] <= i and nf < rate:
            a(side.pop(0)[1]); nf += 1
        a(txt)
    return side

TAIL = 4
def tail_mf(w, xs, prevbase):
    mf = []
    for cb in range(20 - TAIL, 20):
        for tb in range(4): mf.append((mfma(cb, tb, xs, (prevbase + cb) % NRING), None))
        if w is None and HALO0 <= cb < HALO0 + 4:
            _pid[0] += 1
            mf.append((f"s_cmp_lg_u32 s32, {cb-HALO0}\ns_cbranch_scc1 L_h{_pid[0]}\n" + mfma(cb, 0, xs, (prevbase + cb) % NRING, halo=True) + f"\nL_h{_pid[0]}:", None))
        elif cb == HALO0 + (w if w is not None else -99):
            mf.append((mfma(cb, 0, xs, (prevbase + cb) % NRING, halo=True), None))
    return mf

def g1_segment(a, w, st, P):
    n = len(dma_slots(w))
    xs = st & 1
    ringbase = (st * 20) % NRING
    prevbase = ((st - 1) * 20) % NRING
    mf = tail_mf(w, xs ^ 1, prevbase)
    ntail = len(mf)
    cbstart = {}
    for cb in range(0, 20 - TAIL):
        cbstart[cb] = len(mf)
        for tb in range(4):
            mf.append((mfma(cb, tb, xs, (ringbase + cb) % NRING), [("W", cb)] + ([("X", tb)] if cb == 0 else [])))
        if cb == HALO0 + w:
            mf.append((mfma(cb, 0, xs, (ringbase + cb) % NRING, halo=True), None))
    NM = len(mf)
    fill = [[] for _ in range(NM + 1)]
    early = [("X", 0, x_read(0, st, xs)), ("W", 0, w_read(0, st, 0, ringbase % NRING)), ("W", 0, w_read(0, st, 1, ringbase % NRING))]
    early += [("X", i, x_read(i, st, xs)) for i in (1, 2, 3)]
    for cb in range(1, TAIL):
        early += [("W", cb, w_read(cb, st, h, (ringbase + cb) % NRING)) for h in (0, 1)]
        if cb == 1: early += [("X", 4, x_read(4, st, xs))]
    for i, e in enumerate(early): fill[min(i, ntail - 1)].append(e)
    LASTB = P.get("lastb", 20 - TAIL - 3)
    rest = list(range(TAIL, 20))
    for idx, cb in enumerate(rest):
        ib = (idx * (LASTB + 1)) // len(rest)
        if cb - NRING >= 0: ib = max(ib, cb - NRING + 1)
        base = cbstart[ib]
        used = any(x[0] == "W" for x in fill[base + 1])
        cand = [base + 1, base + 3] if not used else [base, base + 2]
        fill[cand[0]].append(("W", cb, w_read(cb, st, 0, (ringbase + cb) % NRING)))
        fill[cand[1]].append(("W", cb, w_read(cb, st, 1, (ringbase + cb) % NRING)))
    ops = dma_ops(w, (st + 3) % 4)
    d0 = P.get("dma0", 2); d1 = P.get("dma1", NM - 8)
    for i, ins in enumerate(ops):
        pos = d0 + (i * (d1 - d0)) // len(ops)
        for kind, txt in ins: fill[max(pos - 1, 0) if kind == "m0" else pos].append(("S", 0, txt))
    for txt in soff_adv(w): fill[NM - 2].append(("S", 0, txt))
    emit_sched(a, mf, fill)
    a(f"s_waitcnt vmcnt({2*n}) lgkmcnt(0)")
    a("s_barrier")

def pack_t(dst, src):
    return [f"v_cvt_pk_bf16_f32 v{dst}, v{src}, v{src+1}", f"v_cvt_pk_bf16_f32 v{dst+1}, v{src+2}, v{src+3}"]
def glu_t(j, tb, dst, tmp):
    ng = (j*4 + tb)*4
    r = [f"v_accvgpr_read_b32 v{tmp+k}, a{ng+k}" for k in range(4)]
    if j < NUPV:
        u = V_UP + (j*4+tb)*4
    else:
        u = tmp + 4
        nu = A_UP + ((j-NUPV)*4+tb)*4
        r += [f"v_accvgpr_read_b32 v{u+k}, a{nu+k}" for k in range(4)]
    r += [f"v_pk_mul_f32 v[{tmp}:{tmp+1}], v[{tmp}:{tmp+1}], v[{u}:{u+1}]", f"v_pk_mul_f32 v[{tmp+2}:{tmp+3}], v[{tmp+2}:{tmp+3}], v[{u+2}:{u+3}]"]
    return r + pack_t(dst, tmp)
VS = V_T + 6

def g1_final(a, P):
    prevbase = (1 * 20) % NRING
    mf = tail_mf(None, 1, prevbase)
    ntail = len(mf)
    seq = []
    for p in range(0, 20, 2):
        seq += [(p, 2), (p+1, 2), (p, 3), (p+1, 3)]
    fstart = {}; fend = {}
    for f, (cb, st) in enumerate(seq):
        xs = st & 1
        fstart[f] = len(mf)
        for tb in range(4):
            need = [("W", f)] + ([("X", st*8+tb)] if cb == 0 else [])
            mf.append((mfma(cb, tb, xs, f % NRING), need))
        if HALO0 <= cb < HALO0 + 4:
            _pid[0] += 1
            mf.append((f"s_cmp_lg_u32 s32, {cb-HALO0}\ns_cbranch_scc1 L_h{_pid[0]}\n" + mfma(cb, 0, xs, f % NRING, halo=True) + f"\nL_h{_pid[0]}:", None))
        fend[f] = len(mf)
    NM = len(mf)
    fill = [[] for _ in range(NM + 1)]
    R = lambda f, h: ("W", f, w_read(seq[f][0], seq[f][1], h, f % NRING))
    early = [("X", 16, x_read(0, 2, 0)), R(0, 0), R(0, 1)] + [("X", 16+i, x_read(i, 2, 0)) for i in (1, 2, 3)]
    early += [R(1, 0), R(1, 1), ("X", 20, x_read(4, 2, 0)), R(2, 0), R(2, 1), R(3, 0), R(3, 1)]
    for i, e in enumerate(early): fill[min(i, ntail - 1)].append(e)
    for i in range(5): fill[ntail + i // 2].append(("X", 24+i, x_read(i, 3, 1)))
    LEAD = 5
    for f in range(4, 40):
        ib = max(f - LEAD, 0)
        if f - NRING >= 0: ib = max(ib, f - NRING + 1)
        base = fstart[ib]
        used = any(x[0] == "W" for x in fill[base + 1])
        cand = [base + 1, base + 3] if not used else [base + 2, base + 3]
        if ib == 0: cand = [c + 2 for c in cand]
        fill[cand[0]].append(R(f, 0)); fill[cand[1]].append(R(f, 1))
    side = []
    cnt = 0
    for jp in range(3):
        ready = fend[(2*jp+1)*4 + 3] + 6
        for tb in range(4):
            o = V_E + 8 + (cnt % 2)*4
            ins = glu_t(2*jp, tb, o, V_E) + glu_t(2*jp+1, tb, o+2, V_E) + [f"buffer_store_dwordx4 v[{o}:{o+3}], v{VS}, s[24:27], s{49+jp} offen offset:{tb*1024} {P.get('a2s', 'sc1')}"]
            side += [(ready, t) for t in ins]; cnt += 1
    ready = fend[6*4 + 3] + 6
    for tb in range(4):
        o = V_E + 8 + (cnt % 2)*4
        ins = glu_t(6, tb, o, V_E) + [f"buffer_store_dwordx2 v[{o}:{o+1}], v{VS+1}, s[24:27], s52 offen offset:{tb*1024} {P.get('a2s', 'sc1')}"]
        side += [(ready, t) for t in ins]; cnt += 1
    rest = emit_sched(a, mf, fill, side, rate=P.get("rate", 2))
    return [t for _, t in rest]

def kperm_code(a, dst, s, t):
    a(f"v_bfe_u32 {dst}, {s}, 2, 2")
    a(f"v_lshlrev_b32 {dst}, 3, {dst}")
    a(f"v_lshrrev_b32 {t}, 4, {s}")
    a(f"v_lshl_add_u32 {dst}, {t}, 2, {dst}")
    a(f"v_and_b32 {t}, 3, {s}")
    a(f"v_add_u32 {dst}, {dst}, {t}")

STG2 = 32768
ACC2 = 64
XA = [4, 20]
WB = [36, 128]
V2_D = 220
R_A = 228
R_B = 232
T2 = 240

def g2_xread(rho, st, sl, xs):
    hi = st >= 2
    off = (st - 2*hi) * STG2 + sl * 8192 + (rho & 1) * 1024
    d = XA[xs] + rho * 4
    return f"ds_read_b128 v[{d}:{d+3}], v{R_A + (rho >> 1) * 2 + hi} offset:{off}"
def g2_wread(cb, h, st, sl, xs):
    hi = st >= 2
    off = (st - 2*hi) * STG2 + sl * 8192 + h * 4096
    d = WB[xs] + cb * 4 + h * 2
    return f"ds_read_b64_tr_b16 v[{d}:{d+1}], v{R_B + cb * 2 + hi} offset:{off}"
def g2_mf(rho, cb, xs):
    c = ACC2 + (rho * 4 + cb) * 4
    return f"v_mfma_f32_16x16x32_bf16 v[{c}:{c+3}], v[{WB[xs]+cb*4}:{WB[xs]+cb*4+3}], v[{XA[xs]+rho*4}:{XA[xs]+rho*4+3}], v[{c}:{c+3}]"
def g2_dma(role, buf):
    ops = []
    for t in range(8):
        ins = []
        if t % 4 == 0: ins.append(("m0", f"s_add_u32 m0, s36, {buf*STG2 + t*1024}"))
        if role == "A": ins.append(("dma", f"buffer_load_dwordx4 v{V2_D + t//4}, s[8:11], s28 offen offset:{(t%4)*1024} sc1 lds"))
        else: ins.append(("dma", f"buffer_load_dwordx4 v{V2_D + t}, s[12:15], s28 offen offset:{(t%4)*1024} lds"))
        ops.append(ins)
    return ops
def g2_adv(role): return ["s_add_u32 s28, s28, 262144"] if role == "A" else ["s_add_u32 s28, s28, 131072"]
G2_SWITCH = {"B": ["s_cmp_eq_u32 s31, 8", "s_cselect_b32 s12, s38, s12", "s_cselect_b32 s13, s39, s13",
                   "s_cselect_b32 s14, s40, s14", "s_cselect_b32 s28, 0, s28"],
             "A": ["s_cmp_eq_u32 s31, 8", "s_cselect_b32 s28, s38, s28"]}
ORD2 = [(rho, cb) for cb in range(4) for rho in range(4)]
def g2_reads(st, sl, xs):
    r = [("X", 0, g2_xread(0, st, sl, xs)), ("W", 0, g2_wread(0, 0, st, sl, xs)), ("W", 0, g2_wread(0, 1, st, sl, xs))]
    r += [("X", i, g2_xread(i, st, sl, xs)) for i in (1, 2, 3)]
    for cb in (1, 2, 3): r += [("W", cb, g2_wread(cb, h, st, sl, xs)) for h in (0, 1)]
    return r
def g2_segment(a, role, st, P):
    fill = [[] for _ in range(33)]
    for part in range(2):
        rd = g2_reads(st, part, part)
        span = P.get("g2rspan", 10)
        for i, e in enumerate(rd): fill[part*16 + (i * span) // len(rd)].append((e[0], e[1] + 10*part, e[2]))
    if st == 1:
        for t in G2_SWITCH[role]: fill[0].append(("S", 0, t))
    ops = g2_dma(role, (st + 3) % 4)
    d0, d1 = P.get("g2d0", 2), P.get("g2d1", 30)
    for i, ins in enumerate(ops):
        pos = d0 + (i * (d1 - d0)) // len(ops)
        for kind, txt in ins: fill[pos - 1 if kind == "m0" else pos].append(("S", 0, txt))
    for t in g2_adv(role): fill[31].append(("S", 0, t))
    mf = [(g2_mf(rho, cb, 1), None) for rho, cb in ORD2] + [(g2_mf(rho, cb, 0), [("X", rho), ("W", cb)]) for rho, cb in ORD2]
    emit_sched(a, mf, fill)
    a("s_waitcnt vmcnt(16) lgkmcnt(0)")
    a("s_barrier")

def g2_ids(a):
    a("s_and_b32 s60, s2, 1")
    a("s_bfe_u32 s61, s2, 0x20001"); a("s_lshl_b32 s61, s61, 2")
    a("s_bfe_u32 s47, s2, 0x20003"); a("s_add_u32 s61, s61, s47")
    a("s_lshr_b32 s62, s2, 5")
    a("s_lshl_b32 s63, s62, 8")

def g2_vsetup(a, w):
    g2_ids(a)
    if w < 2:
        a(f"v_add_u32 v{V2_D}, {w*131072}, v3")
        a(f"v_add_u32 v{V2_D+1}, 4096, v{V2_D}")
        for t in range(2, 8): a(f"v_mov_b32 v{V2_D+t}, {BIG}")
    else:
        a(f"v_lshrrev_b32 v{T2}, 4, v1")
        a(f"v_bfe_u32 v{T2+1}, v1, 1, 3")
        a(f"v_and_b32 v{T2+2}, 1, v1")
        for t in range(2):
            a(f"v_add_u32 v{T2+3}, {4*t}, v{T2}")
            a(f"v_xor_b32 v{T2+4}, v{T2+3}, v{T2+1}")
            a(f"v_lshl_or_b32 v{T2+4}, v{T2+4}, 1, v{T2+2}")
            a(f"v_lshlrev_b32 v{T2+3}, 11, v{T2+3}")
            a(f"v_lshl_add_u32 v{T2+3}, v{T2+4}, 4, v{T2+3}")
            for u in range(t, 8, 2):
                a(f"v_add_u32 v{V2_D+u}, {(32*(w&1) + 4*(u-t))*2048 - 1024*(u%4)}, v{T2+3}")
    a("s_lshl_b32 s41, s60, 11")
    a(f"s_add_u32 s4, s41, {(w>>1)*4096}")
    a("s_xor_b32 s5, s4, 2048")
    a(f"v_add_u32 v{R_A}, s4, v3"); a(f"v_add_u32 v{R_A+1}, {2*STG2}, v{R_A}")
    a(f"v_add_u32 v{R_A+2}, s5, v3"); a(f"v_add_u32 v{R_A+3}, {2*STG2}, v{R_A+2}")
    a(f"v_lshrrev_b32 v{T2}, 2, v1")
    a(f"v_and_b32 v{T2+1}, 7, v{T2}")
    a(f"v_and_b32 v{T2+2}, 3, v1")
    a(f"v_lshlrev_b32 v{T2+2}, 3, v{T2+2}")
    a(f"v_lshl_add_u32 v{T2+2}, v{T2}, 8, v{T2+2}")
    a(f"v_add_u32 v{T2+2}, 16384, v{T2+2}")
    for cb in range(4):
        a(f"v_xor_b32 v{T2+3}, {(w&1)*4 + cb}, v{T2+1}")
        a(f"v_lshl_add_u32 v{R_B+2*cb}, v{T2+3}, 5, v{T2+2}")
        a(f"v_add_u32 v{R_B+2*cb+1}, {2*STG2}, v{R_B+2*cb}")
    a("s_lshl_b32 s47, s61, 1"); a("s_add_u32 s47, s47, s60"); a("s_lshl_b32 s47, s47, 7"); a(f"s_add_u32 s47, s47, {F2_OFF}")
    a(f"v_lshl_add_u32 v{T2+5}, v1, 2, s47")
    a(f"v_lshrrev_b32 v{T2+7}, 2, v1"); a(f"v_lshlrev_b32 v{T2+7}, 11, v{T2+7}")
    a(f"v_and_b32 v{T2}, 1, v1"); a(f"v_lshl_add_u32 v{T2+7}, v{T2}, 7, v{T2+7}")
    a(f"v_and_b32 v{T2}, 2, v1"); a(f"v_lshl_add_u32 v{T2+7}, v{T2}, 9, v{T2+7}")
    a(f"v_add_u32 v{T2+7}, 256, v{T2+7}")
    a("s_lshl_b32 s4, s61, 7"); a(f"s_add_u32 s4, s4, {(w>>1)*64}")
    a("s_lshl_b32 s5, s60, 5"); a("s_add_u32 s4, s4, s5"); a("s_lshl_b32 s4, s4, 11")
    a(f"s_add_u32 s5, s63, {(w&1)*128}"); a("s_add_u32 s4, s4, s5")
    X = T2 + 9
    a(f"v_and_b32 v{X}, 15, v1"); a(f"v_lshlrev_b32 v{X}, 11, v{X}")
    a(f"v_and_b32 v{T2+1}, 16, v1"); a(f"v_lshl_add_u32 v{X}, v{T2+1}, 1, v{X}")
    a(f"v_and_b32 v{T2+1}, 32, v1"); a(f"v_lshrrev_b32 v{T2+1}, 1, v{T2+1}"); a(f"v_add3_u32 v{X}, v{X}, v{T2+1}, s4")

def g2_ssetup(a):
    g2_ids(a)
    a("s_lshl_b32 s41, s61, 13")
    a(f"s_add_u32 s47, s41, {WS_A2}")
    srd(a, 8, P_WS, "s47", 0)
    a("s_mul_i32 s10, s60, 56"); a("s_add_u32 s10, s10, 88"); a("s_lshl_b32 s10, s10, 17"); a("s_sub_u32 s10, s10, s41")
    a("s_lshl_b32 s47, s60, 20"); a("s_add_u32 s47, s47, s63")
    srd(a, 12, P_WO, "s47", 0); a(f"s_sub_u32 s14, {512*2048}, s63")
    a(f"s_mul_i32 s41, s60, {1792*2048}"); a("s_add_u32 s47, s41, s63")
    a(f"s_add_u32 s4, s{P_D}, s47"); a(f"s_addc_u32 s39, s{P_D+1}, 0"); a("s_and_b32 s39, s39, 0xffff")
    a(f"s_sub_u32 s40, {1792*2048}, s63")
    srd(a, 92, P_D, "s41", 1792*2048)
    a("s_lshr_b32 s59, s2, 3"); a("s_lshl_b32 s59, s59, 14")
    a("s_mul_i32 s5, s60, 56"); a("s_add_u32 s5, s5, 32"); a("s_lshl_b32 s5, s5, 17")
    a("s_lshl_b32 s6, s60, 21")
    a("s_cmp_lt_u32 s32, 2")
    a("s_cselect_b32 s38, s5, s4")
    a("s_cselect_b32 s28, s6, 0")
    a("s_lshl_b32 s36, s32, 13")

def gen(a, P):
    KN = NAME + "_kernel"
    a.kernel(KN, (256,1,1), 256, 163840, vgpr=NV, agpr=NA, sgpr=102)
    a.launch[-1] = "; @launch grid=(256,1,1) block=(256,1,1) lds=163840"
    a("s_cmp_ge_u32 s2, 256")
    a("s_cbranch_scc1 L_end")
    a("s_load_dwordx16 s[64:79], s[0:1], 0")
    a("s_load_dwordx4 s[80:83], s[0:1], 64")
    a("s_getpc_b64 s[4:5]")
    if P.get("tl"): a("v_mov_b32 v255, 0")
    stamp(a, P, 0)
    a("v_and_b32 v1, 63, v0")
    a("v_lshrrev_b32 v2, 6, v0")
    L = 76
    a("v_and_b32 v4, 7, v1")
    a("v_lshrrev_b32 v5, 3, v1")
    a("v_readfirstlane_b32 s32, v2")
    a("s_lshl_b32 s3, s2, 3")
    a("v_add_u32 v6, s3, v4")
    a("v_lshlrev_b32 v7, 11, v6")
    a("s_lshl_b32 s47, s32, 9")
    a("v_lshl_add_u32 v8, v5, 4, v7")
    a("v_add_u32 v8, s47, v8")
    a("v_mov_b32 v9, 0")
    a("s_lshr_b32 s48, s2, 3"); a("s_lshl_b32 s48, s48, 2"); a("s_add_u32 s48, s48, s32"); a("s_lshl_b32 s48, s48, 9")
    a("v_lshlrev_b32 v13, 7, v1")
    a("s_and_b32 s5, s5, 0xffff"); a("s_and_b32 s4, s4, 0xffffff00"); a("s_mov_b32 s6, L_end_code-" + KN); a("s_mov_b32 s7, 0x00020000")
    a("s_waitcnt lgkmcnt(0)")
    if P.get("wsoff"):
        a(f"s_add_u32 s{P_WS}, s{P_WS}, {P['wsoff'] << 20}"); a(f"s_addc_u32 s{P_WS+1}, s{P_WS+1}, 0")
    srd(a, 24, P_X, 0, 4 << 20)
    for i in range(4):
        a(f"buffer_load_dwordx4 v[{L+4*i}:{L+4*i+3}], v8, s[24:27], 0 offen offset:{128*i} nt")
    a("buffer_load_dword v10, v7, s[24:27], 0 offen nt")
    srd(a, S_FL, P_WS, WS_FLAG, FLAG_BYTES)
    a(f"s_mov_b32 s47, {EP_OFF}")
    a(f"buffer_load_dword v11, v9, s[{S_FL}:{S_FL+3}], s47 offen sc1")
    a("s_mov_b64 exec, 15")
    a(f"buffer_load_dword v{V_T+8}, v13, s[4:7], s48 offen")
    a("s_mov_b64 exec, -1")
    a("s_and_b32 s33, s2, 7")
    a("s_lshl_b32 s33, s33, 2")
    a("s_bfe_u32 s34, s2, 0x20003")
    a("s_add_u32 s33, s33, s34")
    a("s_lshr_b32 s34, s2, 5")
    a("s_movk_i32 s54, 6144"); a("s_movk_i32 s55, 7168")
    a("v_lshlrev_b32 v3, 4, v1")
    T = [f"v{V_T+i}" for i in range(8)]
    VPF = V_T + 11
    PFP = P.get("pfp", 7)
    a(f"s_movk_i32 s57, {(65536+6)//7}"); a("s_movk_i32 s49, 896")
    a("s_cmp_eq_u32 s32, 1")
    a(f"s_cselect_b32 s92, s{P_QKV}, s{P_G}"); a(f"s_cselect_b32 s93, s{P_QKV+1}, s{P_G+1}")
    a("s_cselect_b32 s56, 6, 7"); a(f"s_cselect_b32 s57, {(65536+5)//6}, s57")
    a("s_cselect_b32 s58, s54, s55")
    a("s_cselect_b32 s49, 256, s49")
    a("s_cselect_b32 s50, 1792, 0")
    a("s_cmp_eq_u32 s32, 3")
    a(f"s_cselect_b32 s92, s{P_U}, s92"); a(f"s_cselect_b32 s93, s{P_U+1}, s93")
    a("s_and_b32 s93, s93, 0xffff"); a("s_lshl_b32 s94, s58, 10"); a("s_mov_b32 s95, 0x00020000")
    a(f"v_mul_u32_u24 {T[0]}, s57, v1")
    a(f"v_lshrrev_b32 {T[0]}, 16, {T[0]}")
    a(f"v_mul_u32_u24 {T[1]}, s56, {T[0]}")
    a(f"v_sub_u32 {T[1]}, v1, {T[1]}")
    a("s_lshr_b32 s47, s2, 3")
    a(f"v_lshl_add_u32 {T[2]}, {T[0]}, 5, s47")
    a(f"v_mul_u32_u24 {T[2]}, s58, {T[2]}")
    a(f"v_lshl_add_u32 {T[2]}, {T[1]}, 7, {T[2]}")
    a(f"v_lshrrev_b32 {T[3]}, 1, {T[1]}")
    a(f"v_mul_u32_u24 {T[3]}, s50, {T[3]}")
    a("s_and_b32 s47, s2, 7"); a("s_mul_i32 s47, s47, s49")
    a(f"v_add3_u32 {T[2]}, {T[2]}, {T[3]}, s47")
    a("s_cmp_eq_u32 s32, 0")
    a(f"s_cselect_b32 s49, 0, {PFP}"); a("s_cselect_b32 s50, 0, 4")
    a(f"v_mov_b32 {T[3]}, {BIG}")
    a(f"v_cmp_gt_u32 vcc, s49, {T[0]}")
    a("s_nop 1")
    a(f"v_cndmask_b32 {T[4]}, {T[3]}, {T[2]}, vcc")
    a(f"v_cmp_gt_u32 vcc, s50, {T[0]}")
    a(f"buffer_load_dword v{V_T+8}, {T[4]}, s[92:95], 0 offen")
    a(f"v_cndmask_b32 v{VPF}, {T[3]}, {T[2]}, vcc")
    a(f"s_mul_i32 s59, s58, {PFP*32}")
    a("s_lshl_b32 s97, s58, 7")
    a("v_lshrrev_b32 v12, 2, v5")
    a("v_lshlrev_b32 v12, 17, v12")
    a("v_and_b32 v13, 3, v5")
    a("v_lshl_add_u32 v12, v13, 8, v12")
    a("v_lshrrev_b32 v13, 4, v6")
    a("v_lshl_add_u32 v12, v13, 10, v12")
    a("v_and_b32 v13, 15, v6")
    a("v_lshl_add_u32 v12, v13, 4, v12")
    a("s_lshl_b32 s47, s32, 20")
    a("v_add_u32 v12, s47, v12")
    srd(a, 8, P_WS, 0, 4 << 20)
    a("s_mov_b32 s60, 0x40000"); a("s_mov_b32 s61, 0x80000"); a("s_mov_b32 s62, 0xc0000")
    a("v_lshlrev_b32 v13, 5, v4")
    a(f"v_add_u32 v13, {XCH}, v13")
    a("s_lshl_b32 s47, s32, 3")
    a("v_add_u32 v14, s47, v13")
    a("s_waitcnt vmcnt(2)")
    stamp(a, P, 1)
    a(f"v_readfirstlane_b32 s{S_EP}, v11")
    a("v_lshlrev_b32 v10, 16, v10")
    F = 92
    for k in range(16):
        a(f"v_lshlrev_b32 v{F+2*k}, 16, v{L+k}")
        a(f"v_and_b32 v{F+2*k+1}, 0xffff0000, v{L+k}")
    a(f"s_add_u32 s{S_EP}, s{S_EP}, 1")
    a("v_mov_b32 v11, v10")
    a(f"v_pk_add_f32 v[16:17], v[{F}:{F+1}], v[10:11] neg_lo:[0,1] neg_hi:[0,1]")
    a("v_pk_mul_f32 v[18:19], v[16:17], v[16:17]")
    for k in range(2, 32, 2):
        a(f"v_pk_add_f32 v[20:21], v[{F+k}:{F+k+1}], v[10:11] neg_lo:[0,1] neg_hi:[0,1]")
        a("v_pk_add_f32 v[16:17], v[16:17], v[20:21]")
        a("v_pk_fma_f32 v[18:19], v[20:21], v[20:21], v[18:19]")
    a("v_add_f32 v16, v16, v17"); a("v_add_f32 v17, v18, v19")
    a("s_nop 0")
    a("v_add_f32_dpp v16, v16, v16 row_ror:8 row_mask:0xf bank_mask:0xf")
    a("v_add_f32_dpp v17, v17, v17 row_ror:8 row_mask:0xf bank_mask:0xf")
    for op in ("v_permlane16_swap_b32", "v_permlane32_swap_b32"):
        a("v_mov_b32 v18, v16"); a("v_mov_b32 v19, v17")
        a("s_nop 1")
        a(f"{op} v16, v18"); a(f"{op} v17, v19")
        a("s_nop 1")
        a("v_pk_add_f32 v[16:17], v[16:17], v[18:19]")
    a("ds_write_b64 v14, v[16:17]")
    a("s_waitcnt lgkmcnt(0)")
    a("s_barrier")
    a("ds_read_b128 v[20:23], v13")
    a("ds_read_b128 v[24:27], v13 offset:16")
    a("s_waitcnt lgkmcnt(0)")
    a("v_pk_add_f32 v[16:17], v[20:21], v[22:23]")
    a("v_pk_add_f32 v[18:19], v[24:25], v[26:27]")
    a("v_pk_add_f32 v[16:17], v[16:17], v[18:19]")
    a(f"v_mul_f32 v16, {1.0/1024!r}, v16")
    a(f"v_mul_f32 v17, {1.0/1024!r}, v17")
    a("v_fma_f32 v17, -v16, v16, v17")
    a("v_max_f32 v17, 0, v17")
    a("v_add_f32 v16, v16, v10")
    bf16_round(a, "v17", "v17")
    a(f"v_add_f32 v17, {1e-5!r}, v17")
    bf16_round(a, "v17", "v17")
    a("v_sqrt_f32 v17, v17")
    bf16_round(a, "v16", "v16")
    bf16_round(a, "v17", "v17")
    a("v_rcp_f32 v20, v17")
    a("v_mov_b32 v17, v16")
    a("v_mov_b32 v21, v20")
    for i in range(4):
        for d in range(4):
            o = F + 2*(4*i+d)
            a(f"v_pk_add_f32 v[{o}:{o+1}], v[{o}:{o+1}], v[16:17] neg_lo:[0,1] neg_hi:[0,1]")
            a(f"v_cvt_pk_bf16_f32 v18, v{o}, v{o+1}")
            a(f"v_lshlrev_b32 v{o}, 16, v18"); a(f"v_and_b32 v{o+1}, 0xffff0000, v18")
            a(f"v_pk_mul_f32 v[{o}:{o+1}], v[{o}:{o+1}], v[20:21]")
            a(f"v_cvt_pk_bf16_f32 v{L+4*i+d}, v{o}, v{o+1}")
        a(f"buffer_store_dwordx4 v[{L+4*i}:{L+4*i+3}], v12, s[8:11], {'0' if i == 0 else 's%d' % (59+i)} offen sc1")
    stamp(a, P, 2)
    a("s_cmp_eq_u32 s34, 0")
    a("s_cselect_b32 s35, 0, 1024")
    a("s_lshl_b32 s42, s34, 14")
    a("s_sub_u32 s42, s42, s35")
    a("s_lshl_b32 s43, s33, 6")
    a("s_mul_i32 s44, s33, 224")
    a("s_mov_b32 s28, 0"); a("s_mov_b32 s29, 0"); a("s_mov_b32 s30, 0")
    a("s_and_b32 s45, s33, 1")
    a("s_lshl_b32 s46, s45, 1")
    a("s_movk_i32 s52, 5462"); a("s_movk_i32 s53, 4682")
    srd(a, 12, P_QKV, "s43", 0); a(f"s_sub_u32 s14, {1024*6144}, s43")
    srd(a, 16, P_G, "s44", 0); a(f"s_sub_u32 s18, {1024*7168}, s44")
    srd(a, 20, P_U, "s44", 0); a(f"s_sub_u32 s22, {1024*7168}, s44")
    srd(a, 24, P_WS, WS_A2, A2_BYTES)
    a("s_lshl_b32 s47, s34, 5")
    a("s_sub_u32 s47, s47, 2")
    a(f"v_add_u32 v{V_T+12}, s47, v1")
    a(f"v_max_i32 v{V_T+12}, 0, v{V_T+12}")
    a(f"v_lshlrev_b32 v{V_T+12}, 2, v{V_T+12}")
    a("s_mov_b32 s31, 8")
    for r_ in range(V_DMA + 8, V_DMA + 10): a(f"v_mov_b32 v{r_}, {BIG}")
    for w in range(1, 4):
        a(f"s_cmp_eq_u32 s32, {w}")
        a(f"s_cbranch_scc1 L_g1_w{w}")
    def common(w):
        a("s_call_b64 s[62:63], L_common")
        g2_vsetup(a, w)
        a(f"v_lshlrev_b32 {T[0]}, 7, v1"); a(f"v_mov_b32 {T[1]}, {BIG}")
        a(f"v_cmp_gt_u32 vcc, {28 if w == 0 else 8}, v1"); a("s_nop 1")
        a(f"v_cndmask_b32 v{V_T+9}, {T[1]}, {T[0]}, vcc")
        if w == 0: srd(a, 48, P_D, 0, 3584*2048); a("s_mul_i32 s60, s2, 28672")
        else: srd(a, 48, P_WO, 0, 1024*2048); a("s_lshl_b32 s60, s2, 13")
        a("s_lshl_b32 s47, s34, 14"); a(f"s_add_u32 s47, s47, {w*4096}")
        a(f"v_add_u32 v{VS}, s47, v3")
        a("s_lshl_b32 s47, s45, 3")
        a(f"v_add_u32 v{VS+1}, s47, v{VS}")
    for w in range(4):
        a.label(f"L_g1_w{w}")
        vi = 0
        for g in dma_groups(w):
            for gi, s_ in enumerate(g):
                kind, idx = slot_info(s_)
                d = f"v{V_DMA+vi}"
                if kind == "A":
                    if idx == 0: a(f"v_mov_b32 {d}, v3")
                    else:
                        a(f"s_add_u32 s47, s35, {(idx-1)*1024 - gi*1024}")
                        a(f"v_add_u32 {d}, s47, v3")
                elif kind == "Q":
                    a(f"v_add_u32 {T[0]}, {idx*64}, v1")
                    a(f"v_mul_u32_u24 {T[1]}, s52, {T[0]}")
                    a(f"v_lshrrev_b32 {T[1]}, 16, {T[1]}")
                    a(f"v_mul_u32_u24 {T[2]}, 12, {T[1]}")
                    a(f"v_sub_u32 {T[2]}, {T[0]}, {T[2]}")
                    kperm_code(a, T[3], T[1], T[4])
                    a(f"v_mul_u32_u24 {T[3]}, s54, {T[3]}")
                    a(f"v_lshrrev_b32 {T[4]}, 2, {T[2]}")
                    a(f"v_lshl_add_u32 {T[3]}, {T[4]}, 11, {T[3]}")
                    a(f"v_lshrrev_b32 {T[4]}, 1, {T[1]}")
                    a(f"v_xor_b32 {T[4]}, {T[4]}, {T[2]}")
                    a(f"v_and_b32 {T[4]}, 2, {T[4]}")
                    a(f"v_and_or_b32 {T[4]}, {T[2]}, 1, {T[4]}")
                    a(f"v_lshl_add_u32 {T[3]}, {T[4]}, 4, {T[3]}")
                    a(f"v_subrev_u32 {d}, {gi*1024}, {T[3]}")
                else:
                    a(f"v_add_u32 {T[0]}, {idx*64}, v1")
                    a(f"v_mul_u32_u24 {T[1]}, s53, {T[0]}")
                    a(f"v_lshrrev_b32 {T[1]}, 16, {T[1]}")
                    a(f"v_mul_u32_u24 {T[2]}, 14, {T[1]}")
                    a(f"v_sub_u32 {T[2]}, {T[0]}, {T[2]}")
                    a(f"v_add_u32 {T[2]}, s46, {T[2]}")
                    a(f"v_subrev_u32 {T[4]}, 14, {T[2]}")
                    a(f"v_min_u32 {T[2]}, {T[2]}, {T[4]}")
                    kperm_code(a, T[3], T[1], T[4])
                    a(f"v_mul_u32_u24 {T[3]}, s55, {T[3]}")
                    a(f"v_lshl_add_u32 {T[3]}, {T[2]}, 4, {T[3]}")
                    a(f"v_subrev_u32 {d}, {gi*1024}, {T[3]}")
                vi += 1
        a(f"v_add_u32 v{V_RX}, {(1+4*w)*1024}, v3")
        a(f"v_add_u32 v{V_RX+1}, {(1+4*w)*1024 + 2*STG}, v3")
        a("s_waitcnt vmcnt(0)")
        a("s_barrier")
        stamp(a, P, 3)
        if w == 0:
            a("s_lshl_b32 s47, s2, 2")
            flag_store(a, "s47", "v15", "v16")
        srd(a, 8, P_WS, "s42", 0); a(f"s_sub_u32 s10, {4<<20}, s42")
        def dmas():
            for sl in range(3):
                for ins in dma_ops(w, sl):
                    for kind, txt in ins:
                        a(txt)
                        if kind == "m0": a("s_nop 0")
                for txt in soff_adv(w): a(txt)
        if w < 2:
            common(w)
            poll(a, V_T+12, T2+10, 34, P)
            stamp(a, P, 4)
            dmas()
        else:
            dmas()
            stamp(a, P, 4)
            common(w)
        n = len(dma_slots(w))
        a(f"s_waitcnt vmcnt({2*n})")
        a("s_barrier")
        stamp(a, P, 5)
        a(".p2align 6")
        a.label(f"L_g1_loop{w}")
        for st in range(4):
            if st == 0 and w >= 1:
                a(f"buffer_load_dword v{V_T+8}, v{VPF}, s[92:95], s59 offen")
                a("s_add_u32 s59, s59, s97")
            g1_segment(a, w, st, P)
            if st == 0 and w < 2:
                a(f"buffer_load_dword v{V_T+8}, v{V_T+9}, s[48:51], s60 offen")
                a(f"s_add_u32 s60, s60, {3584 if w == 0 else 1024}")
            if st == 0 and w == 3:
                a("s_cmp_lg_u32 s31, 1")
                a("s_cbranch_scc1 L_g1_nopfo")
                a("s_and_b32 s47, s2, 1"); a("s_lshl_b32 s47, s47, 20")
                a("s_lshr_b32 s56, s2, 3"); a("s_lshl_b32 s56, s56, 15"); a("s_add_u32 s47, s47, s56")
                a(f"buffer_load_dword v{V_T+8}, v{T2+7}, s[48:51], s47 offen")
                a.label("L_g1_nopfo")
            if st == 1:
                a("s_cmp_eq_u32 s31, 1")
                a("s_cbranch_scc1 L_g1_fin")
        a("s_sub_u32 s31, s31, 1")
        a(f"s_branch L_g1_loop{w}")
    a(".p2align 6")
    a.label("L_g1_fin")
    a("s_lshl_b32 s48, s33, 17")
    a("s_mul_i32 s49, s33, 7"); a("s_add_u32 s49, s49, 1"); a("s_lshr_b32 s49, s49, 1"); a("s_add_u32 s49, s49, 32"); a("s_lshl_b32 s49, s49, 17")
    a("s_add_u32 s50, s49, 0x20000")
    a("s_add_u32 s51, s49, 0x40000")
    a("s_lshr_b32 s52, s33, 1"); a("s_mul_i32 s52, s52, 7"); a("s_add_u32 s52, s52, 35"); a("s_lshl_b32 s52, s52, 17")
    a("s_waitcnt vmcnt(0)")
    a("s_barrier")
    rest = g1_final(a, P)
    stamp(a, P, 6)
    epilogue_g1(a, P, rest)
    g2_phase(a, P)
    if P.get("tl"):
        a("s_waitcnt vmcnt(0)")
        stamp(a, P, 15)
        srd(a, 92, P_WS, WS_TL, 65536)
        a("s_lshl_b32 s47, s2, 8")
        a("s_lshl_b32 s48, s32, 6")
        a("s_add_u32 s47, s47, s48")
        a("v_lshlrev_b32 v12, 2, v1")
        a("s_mov_b64 exec, 0xffff")
        a("buffer_store_dword v255, v12, s[92:95], s47 offen")
    a.label("L_end")
    a("s_endpgm")
    a.label("L_common")
    a(f"v_mov_b32 v{V_RH}, v3")
    a(f"v_add_u32 v{V_RH+1}, {2*STG}, v3")
    a(f"v_lshrrev_b32 {T[0]}, 2, v1")
    a(f"v_and_b32 {T[1]}, 3, v1")
    a(f"v_lshlrev_b32 {T[1]}, 3, {T[1]}")
    a(f"v_mul_u32_u24 {T[2]}, 192, {T[0]}")
    a(f"v_add_u32 {T[2]}, {T[2]}, {T[1]}")
    a(f"v_and_b32 {T[3]}, 16, v1")
    a(f"v_lshlrev_b32 {T[3]}, 1, {T[3]}")
    a(f"v_add_u32 v{V_RQ}, {T[2]}, {T[3]}")
    a(f"v_add_u32 v{V_RQ+1}, {2*STG}, v{V_RQ}")
    a(f"v_xor_b32 {T[3]}, 32, {T[3]}")
    a(f"v_add_u32 v{V_RQ+2}, {T[2]}, {T[3]}")
    a(f"v_add_u32 v{V_RQ+3}, {2*STG}, v{V_RQ+2}")
    a(f"v_mul_u32_u24 {T[2]}, 224, {T[0]}")
    a(f"v_add3_u32 v{V_RG}, {T[2]}, {T[1]}, s63") if False else None
    a(f"v_add_u32 v{V_RG}, {T[2]}, {T[1]}")
    a(f"v_add_u32 v{V_RG}, {OFF_G}, v{V_RG}")
    a(f"v_add_u32 v{V_RG+1}, {2*STG}, v{V_RG}")
    for r_ in range(NA): a(f"v_accvgpr_write_b32 a{r_}, 0")
    for r_ in range(4, V_DMA, 2): a(f"v_mov_b64 v[{r_}:{r_+1}], 0")
    a("s_setpc_b64 s[62:63]")
    a.label("L_end_code")

def epilogue_g1(a, P, rest):
    QP, KP, VP0, VP1, HP, B, SH, ONES, S = 4, 32, 52, 62, 20, 22, 28, 72, 104
    T = V_T
    def pack(dst, src):
        for t in pack_t(dst, src): a(t)
    for tb in range(4):
        pack(KP + 4 + tb*4, V_K + tb*8); pack(KP + 4 + tb*4 + 2, V_K + tb*8 + 4)
    for tb in range(4):
        pack(VP0 + (tb+1)*2, V_V + tb*8); pack(VP1 + (tb+1)*2, V_V + tb*8 + 4)
    a("s_lshl_b32 s47, s32, 11")
    a(f"s_add_u32 s47, s47, {XCH + 2048}")
    a(f"v_add_u32 v{T}, s47, v3")
    a(f"v_lshrrev_b32 v{T+1}, 1, v3")
    a(f"v_add_u32 v{T+2}, s47, v{T+1}")
    a(f"ds_write_b128 v{T}, v[{KP+16}:{KP+19}]")
    a(f"ds_write_b64 v{T+2}, v[{VP0+8}:{VP0+9}] offset:1024")
    a(f"ds_write_b64 v{T+2}, v[{VP1+8}:{VP1+9}] offset:1536")
    for tb in range(4):
        pack(QP + tb*4, V_Q + tb*8); pack(QP + tb*4 + 2, V_Q + tb*8 + 4)
    pack(HP, V_H)
    a("s_lshl_b32 s57, s32, 3")
    a("s_lshl_b32 s58, s32, 9")
    a("s_cmp_lt_u32 s32, 2")
    a("s_cselect_b32 s56, 4, 3")
    a("s_cselect_b32 s57, s57, s58")
    a(f"s_add_u32 s57, s57, {XCH}")
    a(f"v_lshlrev_b32 v{T+3}, s56, v1")
    a(f"v_add_u32 v{T+3}, s57, v{T+3}")
    a(f"ds_write_b64 v{T+3}, v[{HP}:{HP+1}]")
    g2_ssetup(a)
    a("s_waitcnt lgkmcnt(0)")
    a("s_barrier")
    a(f"ds_read_b128 v[{KP}:{KP+3}], v{T} offset:63488")
    a.lines.pop()
    a(f"v_subrev_u32 v{T}, 2048, v{T}")
    a(f"v_subrev_u32 v{T+2}, 2048, v{T+2}")
    a(f"ds_read_b128 v[{KP}:{KP+3}], v{T}")
    a(f"ds_read_b64 v[{VP0}:{VP0+1}], v{T+2} offset:1024")
    a(f"ds_read_b64 v[{VP1}:{VP1+1}], v{T+2} offset:1536")
    a("s_cmp_lt_u32 s32, 2")
    a("s_cbranch_scc1 L_epi_nob")
    for sl in range(3):
        for ins in g2_dma("B", sl):
            for kind, txt in ins:
                a(txt)
                if kind == "m0": a("s_nop 0")
        for t in g2_adv("B"): a(t)
    a.label("L_epi_nob")
    for t in rest: a(t)
    NEG = "0xf149f2ca"
    a(f"v_and_b32 v{T}, 15, v1")
    a(f"v_lshrrev_b32 v{T+1}, 4, v1")
    a(f"v_and_b32 v{T+2}, 1, v1")
    a(f"v_lshlrev_b32 v{SH}, 4, v{T+2}")
    a(f"v_lshl_add_u32 v{T+1}, v{T+1}, 2, v{T+2}")
    a(f"v_add_u32 v{T+3}, 2, v{T+1}")
    a(f"v_add_u32 v{T+4}, 2, v{T}")
    a(f"v_mov_b32 v{T+5}, {NEG}")
    a(f"v_cmp_eq_u32 s[56:57], 1, v{T+2}")
    a(f"v_cmp_le_u32 s[4:5], v{T+1}, v{T}")
    a(f"v_cmp_le_u32 s[6:7], v{T+3}, v{T}")
    a(f"v_cmp_ge_u32 s[42:43], v{T+1}, v{T+4}")
    a(f"v_cmp_ge_u32 s[44:45], v{T+3}, v{T+4}")
    for i in range(4): a(f"v_mov_b32 v{ONES+i}, 0x3f803f80")
    a(f"v_cndmask_b32 v{B}, v{T+5}, 0, s[4:5]")
    a(f"v_cndmask_b32 v{B+1}, v{T+5}, 0, s[6:7]")
    a(f"v_cndmask_b32 v{B+2}, v{T+5}, 0, s[42:43]")
    a(f"v_cndmask_b32 v{B+3}, v{T+5}, 0, s[44:45]")
    a("s_or_b32 s47, s34, s32")
    a("s_cmp_eq_u32 s47, 0")
    a("s_cselect_b64 vcc, -1, 0")
    a(f"v_cndmask_b32 v{B+4}, v{B+2}, v{T+5}, vcc")
    a(f"v_cndmask_b32 v{B+5}, v{B+3}, v{T+5}, vcc")
    a("s_waitcnt lgkmcnt(0)")
    U = lambda tb: S + tb*16
    C = (32 ** -0.5) * math.log2(math.e)
    a(f"s_mov_b32 s47, {hex(f32bits(C))}")
    for tb in (1, 2, 3, 0):
        u = U(tb)
        a(f"v_mfma_f32_16x16x32_bf16 v[{u}:{u+3}], v[{KP+tb*4}:{KP+tb*4+3}], v[{QP+tb*4}:{QP+tb*4+3}], 0")
        a(f"v_mfma_f32_16x16x32_bf16 v[{u+4}:{u+7}], v[{KP+tb*4+4}:{KP+tb*4+7}], v[{QP+tb*4}:{QP+tb*4+3}], 0")
    a("s_nop 2")
    for tb in (1, 2, 3, 0):
        u = U(tb)
        for k in range(4): a(f"v_cndmask_b32 v{u+8+k}, v{u+2*k}, v{u+2*k+1}, s[56:57]")
        pb = B+4 if tb == 0 else B+2
        a(f"v_fma_f32 v{u+8}, v{u+8}, s47, v{pb}")
        a(f"v_fma_f32 v{u+9}, v{u+9}, s47, v{pb+1}")
        a(f"v_fma_f32 v{u+10}, v{u+10}, s47, v{B}")
        a(f"v_fma_f32 v{u+11}, v{u+11}, s47, v{B+1}")
        a(f"v_max3_f32 v{u+12}, v{u+8}, v{u+9}, v{u+10}")
        a(f"v_max_f32 v{u+12}, v{u+12}, v{u+11}")
        a(f"v_mov_b32 v{u+13}, v{u+12}")
    for op in ("v_permlane32_swap_b32", "v_permlane16_swap_b32"):
        a("s_nop 1")
        for tb in (1, 2, 3, 0): a(f"{op} v{U(tb)+12}, v{U(tb)+13}")
        for tb in (1, 2, 3, 0): a(f"v_max_f32 v{U(tb)+12}, v{U(tb)+12}, v{U(tb)+13}")
        if op.startswith("v_permlane32"):
            for tb in (1, 2, 3, 0): a(f"v_mov_b32 v{U(tb)+13}, v{U(tb)+12}")
    for tb in (1, 2, 3, 0):
        u = U(tb)
        for k in range(4): a(f"v_sub_f32 v{u+8+k}, v{u+8+k}, v{u+12}")
        for k in range(4): a(f"v_exp_f32 v{u+8+k}, v{u+8+k}")
        a("s_nop 0")
        for k in range(4): a(f"v_cvt_pk_bf16_f32 v{u+8+k}, v{u+8+k}, 0")
        for k in range(4): a(f"v_lshlrev_b32 v{u+8+k}, v{SH}, v{u+8+k}")
        a("s_nop 1")
        a(f"v_mfma_f32_16x16x32_bf16 v[{u+12}:{u+15}], v[{ONES}:{ONES+3}], v[{u+8}:{u+11}], 0")
        a(f"v_mfma_f32_16x16x32_bf16 v[{u}:{u+3}], v[{VP0+tb*2}:{VP0+tb*2+3}], v[{u+8}:{u+11}], 0")
        a(f"v_mfma_f32_16x16x32_bf16 v[{u+4}:{u+7}], v[{VP1+tb*2}:{VP1+tb*2+3}], v[{u+8}:{u+11}], 0")
    for tb in (1, 2, 3, 0):
        u = U(tb)
        a(f"v_rcp_f32 v{u+12}, v{u+12}")
        a("s_nop 0")
        a(f"v_mov_b32 v{u+13}, v{u+12}")
        for k in range(0, 8, 2): a(f"v_pk_mul_f32 v[{u+k}:{u+k+1}], v[{u+k}:{u+k+1}], v[{u+12}:{u+13}]")
        pack(u+8, u); pack(u+10, u+4)
        a(f"buffer_store_dwordx4 v[{u+8}:{u+11}], v{VS}, s[24:27], s48 offen offset:{tb*1024} {P.get('a2s', 'sc1')}")
    a("s_lshl_b32 s53, s34, 1"); a("s_lshr_b32 s47, s32, 1"); a("s_add_u32 s53, s53, s47"); a("s_lshl_b32 s53, s53, 1")
    a("s_lshr_b32 s47, s33, 4"); a("s_add_u32 s53, s53, s47"); a("s_lshl_b32 s53, s53, 7")
    a("s_and_b32 s47, s33, 15"); a("s_lshl_b32 s47, s47, 3"); a("s_add_u32 s53, s53, s47")
    a("s_and_b32 s47, s32, 1"); a("s_lshl_b32 s47, s47, 2"); a("s_add_u32 s53, s53, s47")
    a(f"s_add_u32 s53, s53, {F2_OFF}")
    a("s_lshl_b32 s37, s2, 2"); a("s_add_u32 s37, s37, s32"); a("s_lshl_b32 s37, s37, 7")

def g2_phase(a, P):
    stamp(a, P, 7)
    a("s_nop 1")
    for r_ in list(range(4, 52, 2)) + list(range(64, 104, 2)): a(f"v_mov_b64 v[{r_}:{r_+1}], 0")
    a("s_mov_b32 s31, 9")
    a("s_waitcnt vmcnt(0)")
    stamp(a, P, 8)
    flag_store(a, "s53", f"v{T2}", f"v{T2+1}")
    for r_ in range(104, 144, 2): a(f"v_mov_b64 v[{r_}:{r_+1}], 0")
    a("s_cmp_ge_u32 s32, 2")
    a("s_cbranch_scc1 L_g2_B")
    for role in ("A", "B"):
        if role == "B": a.label("L_g2_B")
        if role == "A":
            poll(a, T2+5, T2+10, 32, P)
            stamp(a, P, 9)
            for sl in range(3):
                for ins in g2_dma("A", sl):
                    for kind, txt in ins:
                        a(txt)
                        if kind == "m0": a("s_nop 0")
                for t in g2_adv("A"): a(t)
            a("s_waitcnt vmcnt(16)")
        a("s_barrier")
        stamp(a, P, 10)
        a(".p2align 6")
        a.label(f"L_g2_loop{role}")
        if role == "B" and P.get("g2pf", 1):
            a("s_cmp_lg_u32 s32, 2")
            a("s_cbranch_scc1 L_g2_nopfb")
            a("s_mov_b64 exec, 0xffffffff")
            a(f"buffer_load_dword v{T2+8}, v{T2+7}, s[92:95], s59 offen")
            a("s_mov_b64 exec, -1")
            a(f"s_add_u32 s59, s59, {256*2048}")
            a.label("L_g2_nopfb")
        for st in range(4): g2_segment(a, role, st, P)
        a("s_sub_u32 s31, s31, 1")
        a("s_cmp_lg_u32 s31, 0")
        a(f"s_cbranch_scc1 L_g2_loop{role}")
        if role == "A": a("s_branch L_g2_fin")
    a.label("L_g2_fin")
    T = T2; X = T2 + 9
    srd(a, 16, P_WS, WS_PART, 8 << 20)
    srd(a, 24, P_X, 0, 4 << 20)
    srd(a, 20, P_OUT, 0, 4 << 20)
    a("s_lshl_b32 s55, s2, 15"); a("s_lshl_b32 s56, s32, 13"); a("s_add_u32 s55, s55, s56")
    a("s_add_u32 s57, s55, 4096")
    a("s_mov_b32 s54, 32768")
    for cb in range(4):
        for rho in (2, 3): a(g2_mf(rho, cb, 1))
    own = [g2_mf(rho, cb, 1) for cb in range(4) for rho in (0, 1)]
    sts = [(cb, rho) for cb in range(4) for rho in (2, 3)]
    for i, m in enumerate(own):
        a(m)
        if i >= 2:
            pass
    stamp(a, P, 11)
    for cb, rho in sts:
        b = (rho - 2) * 4 + cb
        c = ACC2 + (8 + b) * 4
        a(f"buffer_store_dwordx4 v[{c}:{c+3}], v3, s[16:19], {'s55' if b < 4 else 's57'} offen offset:{(b%4)*1024} sc1")
    for rho in range(2):
        for pr in range(2):
            d = 4 + (rho*2+pr)*4
            a(f"buffer_load_dwordx4 v[{d}:{d+3}], v{X}, s[24:27], {'s54' if rho else '0'} offen offset:{pr*64}")
    a(f"s_add_u32 s53, s37, {F3_OFF}")
    a("s_xor_b32 s58, s53, 512")
    a(f"v_mov_b32 v{T+5}, s58")
    a("s_waitcnt vmcnt(4)")
    stamp(a, P, 12)
    flag_store(a, "s53", f"v{T+1}", f"v{T+2}")
    poll(a, T+5, T+10, 1, P)
    stamp(a, P, 13)
    a("s_xor_b32 s55, s55, 32768"); a("s_xor_b32 s57, s57, 32768")
    for b in range(8):
        c = ACC2 + (8 + b) * 4
        a(f"buffer_load_dwordx4 v[{c}:{c+3}], v3, s[16:19], {'s55' if b < 4 else 's57'} offen offset:{(b%4)*1024} sc1")
    for rho in range(2):
        for pr in range(2):
            i = rho*2+pr
            a(f"s_waitcnt vmcnt({6 - i})")
            c0 = ACC2 + (rho*4 + pr*2)*4; c1 = c0 + 4
            p0 = ACC2 + (8 + rho*4 + pr*2)*4
            for k in range(0, 8, 2): a(f"v_pk_add_f32 v[{c0+k}:{c0+k+1}], v[{c0+k}:{c0+k+1}], v[{p0+k}:{p0+k+1}]")
            a("s_nop 1")
            for k in range(4): a(f"v_permlane16_swap_b32 v{c0+k}, v{c1+k}")
            xd = 4 + i*4
            for k in range(4):
                a(f"v_lshlrev_b32 v{T+2}, 16, v{xd+k}")
                a(f"v_and_b32 v{T+3}, 0xffff0000, v{xd+k}")
                a(f"v_pk_add_f32 v[{c0+2*k}:{c0+2*k+1}], v[{c0+2*k}:{c0+2*k+1}], v[{T+2}:{T+3}]")
                a(f"v_cvt_pk_bf16_f32 v{xd+k}, v{c0+2*k}, v{c0+2*k+1}")
            a(f"buffer_store_dwordx4 v[{xd}:{xd+3}], v{X}, s[20:23], {'s54' if rho else '0'} offen offset:{pr*64}")
    stamp(a, P, 14)
    a("s_or_b32 s47, s2, s32")
    a("s_cmp_lg_u32 s47, 0")
    a("s_cbranch_scc1 L_noep")
    for k in range(4):
        a(f"v_lshlrev_b32 v{T+5}, 2, v1")
        a(f"v_add_u32 v{T+5}, {k*256}, v{T+5}")
        a("s_waitcnt vmcnt(0)")
        poll(a, T+5, T+10, 64, P, depth=1)
    a(f"s_mov_b32 s53, {EP_OFF}")
    flag_store(a, "s53", f"v{T+1}", f"v{T+2}")
    a.label("L_noep")

if __name__ == "__main__":
    out = sys.argv[1]
    P = json.loads(sys.argv[2]) if len(sys.argv) > 2 else {}
    a = Asm()
    gen(a, P)
    hdr = "".join(open("cdna_kernels/" + NAME + ".s.ref").readlines()[:11])
    open(out, "w").write(a.text(hdr))
```

```python
import sys, math, struct, json
from asmlib import *

def f32bits(x): return struct.unpack("<I", struct.pack("<f", x))[0]

WS_A2 = 4 << 20
A2_BYTES = 144 * 128 * 1024
WS_PART = 24 << 20
WS_FLAG = 40 << 20
F1_OFF, F2_OFF, F3_OFF, EP_OFF = 0, 0x1000, 0x10000, 0x30000
FLAG_BYTES = 0x30080
WS_TL = 48 << 20
BIG = "0x7fffff00"

P_X, P_QKV, P_WO, P_BX, P_G, P_U, P_D, P_OUT, P_DBG, P_WS = 64, 66, 68, 70, 72, 74, 76, 78, 80, 82
S_EP = 96
S_FL = 84

def srd(a, d, p, off, nbytes):
    if off == 0:
        a(f"s_mov_b32 s{d}, s{p}"); a(f"s_and_b32 s{d+1}, s{p+1}, 0xffff")
    else:
        a(f"s_add_u32 s{d}, s{p}, {off}"); a(f"s_addc_u32 s{d+1}, s{p+1}, 0"); a(f"s_and_b32 s{d+1}, s{d+1}, 0xffff")
    a(f"s_mov_b32 s{d+2}, {nbytes}"); a(f"s_mov_b32 s{d+3}, 0x00020000")

def bf16_round(a, dst, src):
    a(f"v_cvt_pk_bf16_f32 {dst}, {src}, {src}")
    a(f"v_lshlrev_b32 {dst}, 16, {dst}")

_pid = [0]
def set_exec(a, nl):
    if nl <= 32: a(f"s_mov_b64 exec, {hex((1 << nl) - 1)}")
    else:
        a("s_mov_b32 exec_lo, -1"); a(f"s_mov_b32 exec_hi, {hex((1 << (nl - 32)) - 1)}")
def poll(a, vaddr, vt, nl, P, depth=None):
    i = _pid[0]; _pid[0] += 1
    D = depth or P.get("pd", 3)
    ld = lambda k: a(f"buffer_load_dword v{vt+k}, v{vaddr}, s[{S_FL}:{S_FL+3}], 0 offen sc1")
    set_exec(a, nl)
    a("s_mov_b32 s47, 0x20000")
    for k in range(D):
        ld(k)
        if k < D - 1: a(f"s_sleep {P.get('psl', 6)}")
    a.label(f"L_poll{i}")
    for k in range(D):
        a(f"s_waitcnt vmcnt({D-1})")
        a(f"v_cmp_ne_u32 vcc, s{S_EP}, v{vt+k}")
        a("s_nop 4")
        a(f"s_cbranch_vccz L_pollok{i}")
        ld(k)
    a("s_sub_u32 s47, s47, 1")
    a("s_cmp_lg_u32 s47, 0")
    a(f"s_cbranch_scc1 L_poll{i}")
    a("s_branch L_end")
    a.label(f"L_pollok{i}")
    a("s_mov_b64 exec, -1")

def flag_store(a, soff, vz, ve):
    a(f"v_mov_b32 {vz}, 0"); a(f"v_mov_b32 {ve}, s{S_EP}")
    a("s_mov_b64 exec, 1")
    a(f"buffer_store_dword {ve}, {vz}, s[{S_FL}:{S_FL+3}], {soff} offen sc1")
    a("s_mov_b64 exec, -1")

def stamp(a, P, i):
    if P.get("tl"):
        a("s_memrealtime s[88:89]")
        a("s_waitcnt lgkmcnt(0)")
        a(f"v_writelane_b32 v255, s88, {i}")

STG = 37888
OFF_Q = 17408
OFF_G = OFF_Q + 6144
XCH = 4 * STG
NRING = 8
A_X = [112, 132]
A_W = 152
A_UP = 184
NA = 232
V_Q, V_K, V_V, V_H, V_UP = 4, 36, 68, 100, 104
V_DMA, V_RX, V_RH, V_RQ, V_RG, V_T = 168, 178, 180, 182, 186, 188
V_E = 202
NV = 256
NUPV = 4

def dma_slots(w): return list(range(*[(0,9),(9,17),(17,27),(27,37)][w]))
def slot_info(s):
    if s < 17: return ("A", s)
    if s < 23: return ("Q", s-17)
    if s < 30: return ("G", s-23)
    return ("U", s-30)
def dma_groups(w):
    sl = dma_slots(w)
    if w == 0: return [[0], [1,2,3,4], [5,6,7,8]]
    return [sl[i:i+4] for i in range(0, len(sl), 4)]
CBS = [(t,j) for j in range(7) for t in ("g","u")] + [("k",0),("k",1),("v",0),("v",1),("q",0),("q",1)]
HALO0 = 14
def rr(p, n): return f"{p}[{n}:{n+3}]"
def acc_reg(cb, tb):
    t, j = CBS[cb]
    if t == "q": return rr("v", V_Q+(tb*2+j)*4)
    if t == "k": return rr("v", V_K+(tb*2+j)*4)
    if t == "v": return rr("v", V_V+(tb*2+j)*4)
    if t == "g": return rr("a", (j*4+tb)*4)
    if j < NUPV: return rr("v", V_UP+(j*4+tb)*4)
    return rr("a", A_UP+((j-NUPV)*4+tb)*4)
def w_read(cb, st, h, slot):
    t, j = CBS[cb]
    hi = st >= 2
    stoff = (st - 2*hi) * STG
    d = A_W + slot*4 + h*2
    if t in "qkv":
        base = V_RQ + 2*j + hi
        off = stoff + OFF_Q + h*3072 + "qkv".index(t)*64
    else:
        base = V_RG + hi
        off = stoff + (0 if t == "g" else 7168) + h*3584 + j*32
    assert off < 65536
    return f"ds_read_b64_tr_b16 a[{d}:{d+1}], v{base} offset:{off}"
def x_read(i, st, xs):
    hi = st >= 2
    stoff = (st - 2*hi) * STG
    d = A_X[xs] + i*4
    if i < 4: return f"ds_read_b128 a[{d}:{d+3}], v{V_RX+hi} offset:{stoff + i*1024}"
    return f"ds_read_b128 a[{d}:{d+3}], v{V_RH+hi} offset:{stoff}"
def mfma(cb, tb, xs, slot, halo=False):
    t, j = CBS[cb]
    wv = rr("a", A_W+slot*4)
    xv = rr("a", A_X[xs]+(4 if halo else tb)*4)
    acc = rr("v", V_H) if halo else acc_reg(cb, tb)
    if t == "v": return f"v_mfma_f32_16x16x32_bf16 {acc}, {xv}, {wv}, {acc}"
    return f"v_mfma_f32_16x16x32_bf16 {acc}, {wv}, {xv}, {acc}"
SRDN = {"A": 8, "Q": 12, "G": 16, "U": 20}
SOFF = {"A": 28, "Q": 29, "G": 30, "U": 30}
def dma_ops(w, buf):
    ops = []; vi = 0
    for g in dma_groups(w):
        for gi, s in enumerate(g):
            kind, _ = slot_info(s)
            ins = []
            if gi == 0: ins.append(("m0", f"s_mov_b32 m0, {buf*STG + g[0]*1024}"))
            sc = "sc1 " if kind == "A" else ""
            ins.append(("dma", f"buffer_load_dwordx4 v{V_DMA+vi}, s[{SRDN[kind]}:{SRDN[kind]+3}], s{SOFF[kind]} offen offset:{gi*1024} {sc}lds"))
            ops.append(ins); vi += 1
    return ops
def soff_adv(w):
    kinds = sorted(set(SOFF[slot_info(s)[0]] for s in dma_slots(w)))
    inc = {28: 131072, 29: 32*6144, 30: 32*7168}
    return [f"s_add_u32 s{k}, s{k}, {inc[k]}" for k in kinds]

def emit_sched(a, mf, fill, side=None, rate=2):
    lds = []; done = -1
    side = list(side or [])
    for i, (txt, need) in enumerate(mf):
        nf = 0
        for e in fill[i]:
            a(e[2]); nf += 1
            if e[0] in "WX": lds.append((e[0], e[1]))
        if need:
            last = max(k for k, e in enumerate(lds) if e in need)
            if last > done:
                nw = len(lds) - 1 - last
                a(f"s_waitcnt lgkmcnt({min(nw, 15)})"); nf += 1
                done = last if nw <= 15 else len(lds) - 16
        while side and side[0][0] <= i and nf < rate:
            a(side.pop(0)[1]); nf += 1
        a(txt)
    return side

TAIL = 4
def tail_mf(w, xs, prevbase):
    mf = []
    for cb in range(20 - TAIL, 20):
        for tb in range(4): mf.append((mfma(cb, tb, xs, (prevbase + cb) % NRING), None))
        if w is None and HALO0 <= cb < HALO0 + 4:
            _pid[0] += 1
            mf.append((f"s_cmp_lg_u32 s32, {cb-HALO0}\ns_cbranch_scc1 L_h{_pid[0]}\n" + mfma(cb, 0, xs, (prevbase + cb) % NRING, halo=True) + f"\nL_h{_pid[0]}:", None))
        elif cb == HALO0 + (w if w is not None else -99):
            mf.append((mfma(cb, 0, xs, (prevbase + cb) % NRING, halo=True), None))
    return mf

def g1_segment(a, w, st, P):
    n = len(dma_slots(w))
    xs = st & 1
    ringbase = (st * 20) % NRING
    prevbase = ((st - 1) * 20) % NRING
    mf = tail_mf(w, xs ^ 1, prevbase)
    ntail = len(mf)
    cbstart = {}
    for cb in range(0, 20 - TAIL):
        cbstart[cb] = len(mf)
        for tb in range(4):
            mf.append((mfma(cb, tb, xs, (ringbase + cb) % NRING), [("W", cb)] + ([("X", tb)] if cb == 0 else [])))
        if cb == HALO0 + w:
            mf.append((mfma(cb, 0, xs, (ringbase + cb) % NRING, halo=True), None))
    NM = len(mf)
    fill = [[] for _ in range(NM + 1)]
    early = [("X", 0, x_read(0, st, xs)), ("W", 0, w_read(0, st, 0, ringbase % NRING)), ("W", 0, w_read(0, st, 1, ringbase % NRING))]
    early += [("X", i, x_read(i, st, xs)) for i in (1, 2, 3)]
    for cb in range(1, TAIL):
        early += [("W", cb, w_read(cb, st, h, (ringbase + cb) % NRING)) for h in (0, 1)]
        if cb == 1: early += [("X", 4, x_read(4, st, xs))]
    for i, e in enumerate(early): fill[min(i, ntail - 1)].append(e)
    LASTB = P.get("lastb", 20 - TAIL - 3)
    rest = list(range(TAIL, 20))
    for idx, cb in enumerate(rest):
        ib = (idx * (LASTB + 1)) // len(rest)
        if cb - NRING >= 0: ib = max(ib, cb - NRING + 1)
        base = cbstart[ib]
        used = any(x[0] == "W" for x in fill[base + 1])
        cand = [base + 1, base + 3] if not used else [base, base + 2]
        fill[cand[0]].append(("W", cb, w_read(cb, st, 0, (ringbase + cb) % NRING)))
        fill[cand[1]].append(("W", cb, w_read(cb, st, 1, (ringbase + cb) % NRING)))
    ops = dma_ops(w, (st + 3) % 4)
    d0 = P.get("dma0", 2); d1 = P.get("dma1", NM - 8)
    for i, ins in enumerate(ops):
        pos = d0 + (i * (d1 - d0)) // len(ops)
        for kind, txt in ins: fill[max(pos - 1, 0) if kind == "m0" else pos].append(("S", 0, txt))
    for txt in soff_adv(w): fill[NM - 2].append(("S", 0, txt))
    emit_sched(a, mf, fill)
    a(f"s_waitcnt vmcnt({2*n}) lgkmcnt(0)")
    a("s_barrier")

def pack_t(dst, src):
    return [f"v_cvt_pk_bf16_f32 v{dst}, v{src}, v{src+1}", f"v_cvt_pk_bf16_f32 v{dst+1}, v{src+2}, v{src+3}"]
def glu_t(j, tb, dst, tmp):
    ng = (j*4 + tb)*4
    r = [f"v_accvgpr_read_b32 v{tmp+k}, a{ng+k}" for k in range(4)]
    if j < NUPV:
        u = V_UP + (j*4+tb)*4
    else:
        u = tmp + 4
        nu = A_UP + ((j-NUPV)*4+tb)*4
        r += [f"v_accvgpr_read_b32 v{u+k}, a{nu+k}" for k in range(4)]
    r += [f"v_pk_mul_f32 v[{tmp}:{tmp+1}], v[{tmp}:{tmp+1}], v[{u}:{u+1}]", f"v_pk_mul_f32 v[{tmp+2}:{tmp+3}], v[{tmp+2}:{tmp+3}], v[{u+2}:{u+3}]"]
    return r + pack_t(dst, tmp)
VS = V_T + 6

def g1_final(a, P):
    prevbase = (1 * 20) % NRING
    mf = tail_mf(None, 1, prevbase)
    ntail = len(mf)
    seq = []
    for p in range(0, 20, 2):
        seq += [(p, 2), (p+1, 2), (p, 3), (p+1, 3)]
    fstart = {}; fend = {}
    for f, (cb, st) in enumerate(seq):
        xs = st & 1
        fstart[f] = len(mf)
        for tb in range(4):
            need = [("W", f)] + ([("X", st*8+tb)] if cb == 0 else [])
            mf.append((mfma(cb, tb, xs, f % NRING), need))
        if HALO0 <= cb < HALO0 + 4:
            _pid[0] += 1
            mf.append((f"s_cmp_lg_u32 s32, {cb-HALO0}\ns_cbranch_scc1 L_h{_pid[0]}\n" + mfma(cb, 0, xs, f % NRING, halo=True) + f"\nL_h{_pid[0]}:", None))
        fend[f] = len(mf)
    NM = len(mf)
    fill = [[] for _ in range(NM + 1)]
    R = lambda f, h: ("W", f, w_read(seq[f][0], seq[f][1], h, f % NRING))
    early = [("X", 16, x_read(0, 2, 0)), R(0, 0), R(0, 1)] + [("X", 16+i, x_read(i, 2, 0)) for i in (1, 2, 3)]
    early += [R(1, 0), R(1, 1), ("X", 20, x_read(4, 2, 0)), R(2, 0), R(2, 1), R(3, 0), R(3, 1)]
    for i, e in enumerate(early): fill[min(i, ntail - 1)].append(e)
    for i in range(5): fill[ntail + i // 2].append(("X", 24+i, x_read(i, 3, 1)))
    LEAD = 5
    for f in range(4, 40):
        ib = max(f - LEAD, 0)
        if f - NRING >= 0: ib = max(ib, f - NRING + 1)
        base = fstart[ib]
        used = any(x[0] == "W" for x in fill[base + 1])
        cand = [base + 1, base + 3] if not used else [base + 2, base + 3]
        if ib == 0: cand = [c + 2 for c in cand]
        fill[cand[0]].append(R(f, 0)); fill[cand[1]].append(R(f, 1))
    side = []
    cnt = 0
    for jp in range(3):
        ready = fend[(2*jp+1)*4 + 3] + 6
        for tb in range(4):
            o = V_E + 8 + (cnt % 2)*4
            ins = glu_t(2*jp, tb, o, V_E) + glu_t(2*jp+1, tb, o+2, V_E) + [f"buffer_store_dwordx4 v[{o}:{o+3}], v{VS}, s[24:27], s{49+jp} offen offset:{tb*1024} {P.get('a2s', 'sc1')}"]
            side += [(ready, t) for t in ins]; cnt += 1
    ready = fend[6*4 + 3] + 6
    for tb in range(4):
        o = V_E + 8 + (cnt % 2)*4
        ins = glu_t(6, tb, o, V_E) + [f"buffer_store_dwordx2 v[{o}:{o+1}], v{VS+1}, s[24:27], s52 offen offset:{tb*1024} {P.get('a2s', 'sc1')}"]
        side += [(ready, t) for t in ins]; cnt += 1
    rest = emit_sched(a, mf, fill, side, rate=P.get("rate", 2))
    return [t for _, t in rest]

def kperm_code(a, dst, s, t):
    a(f"v_bfe_u32 {dst}, {s}, 2, 2")
    a(f"v_lshlrev_b32 {dst}, 3, {dst}")
    a(f"v_lshrrev_b32 {t}, 4, {s}")
    a(f"v_lshl_add_u32 {dst}, {t}, 2, {dst}")
    a(f"v_and_b32 {t}, 3, {s}")
    a(f"v_add_u32 {dst}, {dst}, {t}")

STG2 = 32768
ACC2 = 64
XA = [4, 20]
WB = [36, 128]
V2_D = 220
R_A = 228
R_B = 232
T2 = 240

def g2_xread(rho, st, sl, xs):
    hi = st >= 2
    off = (st - 2*hi) * STG2 + sl * 8192 + (rho & 1) * 1024
    d = XA[xs] + rho * 4
    return f"ds_read_b128 v[{d}:{d+3}], v{R_A + (rho >> 1) * 2 + hi} offset:{off}"
def g2_wread(cb, h, st, sl, xs):
    hi = st >= 2
    off = (st - 2*hi) * STG2 + sl * 8192 + h * 4096
    d = WB[xs] + cb * 4 + h * 2
    return f"ds_read_b64_tr_b16 v[{d}:{d+1}], v{R_B + cb * 2 + hi} offset:{off}"
def g2_mf(rho, cb, xs):
    c = ACC2 + (rho * 4 + cb) * 4
    return f"v_mfma_f32_16x16x32_bf16 v[{c}:{c+3}], v[{WB[xs]+cb*4}:{WB[xs]+cb*4+3}], v[{XA[xs]+rho*4}:{XA[xs]+rho*4+3}], v[{c}:{c+3}]"
def g2_dma(role, buf):
    ops = []
    for t in range(8):
        ins = []
        if t % 4 == 0: ins.append(("m0", f"s_add_u32 m0, s36, {buf*STG2 + t*1024}"))
        if role == "A": ins.append(("dma", f"buffer_load_dwordx4 v{V2_D + t//4}, s[8:11], s28 offen offset:{(t%4)*1024} sc1 lds"))
        else: ins.append(("dma", f"buffer_load_dwordx4 v{V2_D + t}, s[12:15], s28 offen offset:{(t%4)*1024} lds"))
        ops.append(ins)
    return ops
def g2_adv(role): return ["s_add_u32 s28, s28, 262144"] if role == "A" else ["s_add_u32 s28, s28, 131072"]
G2_SWITCH = {"B": ["s_cmp_eq_u32 s31, 8", "s_cselect_b32 s12, s38, s12", "s_cselect_b32 s13, s39, s13",
                   "s_cselect_b32 s14, s40, s14", "s_cselect_b32 s28, 0, s28"],
             "A": ["s_cmp_eq_u32 s31, 8", "s_cselect_b32 s28, s38, s28"]}
ORD2 = [(rho, cb) for cb in range(4) for rho in range(4)]
def g2_reads(st, sl, xs):
    r = [("X", 0, g2_xread(0, st, sl, xs)), ("W", 0, g2_wread(0, 0, st, sl, xs)), ("W", 0, g2_wread(0, 1, st, sl, xs))]
    r += [("X", i, g2_xread(i, st, sl, xs)) for i in (1, 2, 3)]
    for cb in (1, 2, 3): r += [("W", cb, g2_wread(cb, h, st, sl, xs)) for h in (0, 1)]
    return r
def g2_segment(a, role, st, P):
    fill = [[] for _ in range(33)]
    for part in range(2):
        rd = g2_reads(st, part, part)
        span = P.get("g2rspan", 10)
        for i, e in enumerate(rd): fill[part*16 + (i * span) // len(rd)].append((e[0], e[1] + 10*part, e[2]))
    if st == 1:
        for t in G2_SWITCH[role]: fill[0].append(("S", 0, t))
    ops = g2_dma(role, (st + 3) % 4)
    d0, d1 = P.get("g2d0", 2), P.get("g2d1", 30)
    for i, ins in enumerate(ops):
        pos = d0 + (i * (d1 - d0)) // len(ops)
        for kind, txt in ins: fill[pos - 1 if kind == "m0" else pos].append(("S", 0, txt))
    for t in g2_adv(role): fill[31].append(("S", 0, t))
    mf = [(g2_mf(rho, cb, 1), None) for rho, cb in ORD2] + [(g2_mf(rho, cb, 0), [("X", rho), ("W", cb)]) for rho, cb in ORD2]
    emit_sched(a, mf, fill)
    a("s_waitcnt vmcnt(16) lgkmcnt(0)")
    a("s_barrier")

def g2_ids(a):
    a("s_and_b32 s60, s2, 1")
    a("s_bfe_u32 s61, s2, 0x20001"); a("s_lshl_b32 s61, s61, 2")
    a("s_bfe_u32 s47, s2, 0x20003"); a("s_add_u32 s61, s61, s47")
    a("s_lshr_b32 s62, s2, 5")
    a("s_lshl_b32 s63, s62, 8")

def g2_vsetup(a, w):
    g2_ids(a)
    if w < 2:
        a(f"v_add_u32 v{V2_D}, {w*131072}, v3")
        a(f"v_add_u32 v{V2_D+1}, 4096, v{V2_D}")
        for t in range(2, 8): a(f"v_mov_b32 v{V2_D+t}, {BIG}")
    else:
        a(f"v_lshrrev_b32 v{T2}, 4, v1")
        a(f"v_bfe_u32 v{T2+1}, v1, 1, 3")
        a(f"v_and_b32 v{T2+2}, 1, v1")
        for t in range(2):
            a(f"v_add_u32 v{T2+3}, {4*t}, v{T2}")
            a(f"v_xor_b32 v{T2+4}, v{T2+3}, v{T2+1}")
            a(f"v_lshl_or_b32 v{T2+4}, v{T2+4}, 1, v{T2+2}")
            a(f"v_lshlrev_b32 v{T2+3}, 11, v{T2+3}")
            a(f"v_lshl_add_u32 v{T2+3}, v{T2+4}, 4, v{T2+3}")
            for u in range(t, 8, 2):
                a(f"v_add_u32 v{V2_D+u}, {(32*(w&1) + 4*(u-t))*2048 - 1024*(u%4)}, v{T2+3}")
    a("s_lshl_b32 s41, s60, 11")
    a(f"s_add_u32 s4, s41, {(w>>1)*4096}")
    a("s_xor_b32 s5, s4, 2048")
    a(f"v_add_u32 v{R_A}, s4, v3"); a(f"v_add_u32 v{R_A+1}, {2*STG2}, v{R_A}")
    a(f"v_add_u32 v{R_A+2}, s5, v3"); a(f"v_add_u32 v{R_A+3}, {2*STG2}, v{R_A+2}")
    a(f"v_lshrrev_b32 v{T2}, 2, v1")
    a(f"v_and_b32 v{T2+1}, 7, v{T2}")
    a(f"v_and_b32 v{T2+2}, 3, v1")
    a(f"v_lshlrev_b32 v{T2+2}, 3, v{T2+2}")
    a(f"v_lshl_add_u32 v{T2+2}, v{T2}, 8, v{T2+2}")
    a(f"v_add_u32 v{T2+2}, 16384, v{T2+2}")
    for cb in range(4):
        a(f"v_xor_b32 v{T2+3}, {(w&1)*4 + cb}, v{T2+1}")
        a(f"v_lshl_add_u32 v{R_B+2*cb}, v{T2+3}, 5, v{T2+2}")
        a(f"v_add_u32 v{R_B+2*cb+1}, {2*STG2}, v{R_B+2*cb}")
    a("s_lshl_b32 s47, s61, 1"); a("s_add_u32 s47, s47, s60"); a("s_lshl_b32 s47, s47, 7"); a(f"s_add_u32 s47, s47, {F2_OFF}")
    a(f"v_lshl_add_u32 v{T2+5}, v1, 2, s47")
    a(f"v_lshrrev_b32 v{T2+7}, 2, v1"); a(f"v_lshlrev_b32 v{T2+7}, 11, v{T2+7}")
    a(f"v_and_b32 v{T2}, 1, v1"); a(f"v_lshl_add_u32 v{T2+7}, v{T2}, 7, v{T2+7}")
    a(f"v_and_b32 v{T2}, 2, v1"); a(f"v_lshl_add_u32 v{T2+7}, v{T2}, 9, v{T2+7}")
    a(f"v_add_u32 v{T2+7}, 256, v{T2+7}")
    a("s_lshl_b32 s4, s61, 7"); a(f"s_add_u32 s4, s4, {(w>>1)*64}")
    a("s_lshl_b32 s5, s60, 5"); a("s_add_u32 s4, s4, s5"); a("s_lshl_b32 s4, s4, 11")
    a(f"s_add_u32 s5, s63, {(w&1)*128}"); a("s_add_u32 s4, s4, s5")
    X = T2 + 9
    a(f"v_and_b32 v{X}, 15, v1"); a(f"v_lshlrev_b32 v{X}, 11, v{X}")
    a(f"v_and_b32 v{T2+1}, 16, v1"); a(f"v_lshl_add_u32 v{X}, v{T2+1}, 1, v{X}")
    a(f"v_and_b32 v{T2+1}, 32, v1"); a(f"v_lshrrev_b32 v{T2+1}, 1, v{T2+1}"); a(f"v_add3_u32 v{X}, v{X}, v{T2+1}, s4")

def g2_ssetup(a):
    g2_ids(a)
    a("s_lshl_b32 s41, s61, 13")
    a(f"s_add_u32 s47, s41, {WS_A2}")
    srd(a, 8, P_WS, "s47", 0)
    a("s_mul_i32 s10, s60, 56"); a("s_add_u32 s10, s10, 88"); a("s_lshl_b32 s10, s10, 17"); a("s_sub_u32 s10, s10, s41")
    a("s_lshl_b32 s47, s60, 20"); a("s_add_u32 s47, s47, s63")
    srd(a, 12, P_WO, "s47", 0); a(f"s_sub_u32 s14, {512*2048}, s63")
    a(f"s_mul_i32 s41, s60, {1792*2048}"); a("s_add_u32 s47, s41, s63")
    a(f"s_add_u32 s4, s{P_D}, s47"); a(f"s_addc_u32 s39, s{P_D+1}, 0"); a("s_and_b32 s39, s39, 0xffff")
    a(f"s_sub_u32 s40, {1792*2048}, s63")
    srd(a, 92, P_D, "s41", 1792*2048)
    a("s_lshr_b32 s59, s2, 3"); a("s_lshl_b32 s59, s59, 14")
    a("s_mul_i32 s5, s60, 56"); a("s_add_u32 s5, s5, 32"); a("s_lshl_b32 s5, s5, 17")
    a("s_lshl_b32 s6, s60, 21")
    a("s_cmp_lt_u32 s32, 2")
    a("s_cselect_b32 s38, s5, s4")
    a("s_cselect_b32 s28, s6, 0")
    a("s_lshl_b32 s36, s32, 13")

def gen(a, P):
    KN = NAME + "_kernel"
    a.kernel(KN, (256,1,1), 256, 163840, vgpr=NV, agpr=NA, sgpr=102)
    a.launch[-1] = "; @launch grid=(256,1,1) block=(256,1,1) lds=163840"
    a("s_cmp_ge_u32 s2, 256")
    a("s_cbranch_scc1 L_end")
    a("s_load_dwordx16 s[64:79], s[0:1], 0")
    a("s_load_dwordx4 s[80:83], s[0:1], 64")
    a("s_getpc_b64 s[4:5]")
    if P.get("tl"): a("v_mov_b32 v255, 0")
    stamp(a, P, 0)
    a("v_and_b32 v1, 63, v0")
    a("v_lshrrev_b32 v2, 6, v0")
    L = 76
    a("v_and_b32 v4, 7, v1")
    a("v_lshrrev_b32 v5, 3, v1")
    a("v_readfirstlane_b32 s32, v2")
    a("s_lshl_b32 s3, s2, 3")
    a("v_add_u32 v6, s3, v4")
    a("v_lshlrev_b32 v7, 11, v6")
    a("s_lshl_b32 s47, s32, 9")
    a("v_lshl_add_u32 v8, v5, 4, v7")
    a("v_add_u32 v8, s47, v8")
    a("v_mov_b32 v9, 0")
    a("s_lshr_b32 s48, s2, 3"); a("s_lshl_b32 s48, s48, 2"); a("s_add_u32 s48, s48, s32"); a("s_lshl_b32 s48, s48, 9")
    a("v_lshlrev_b32 v13, 7, v1")
    a("s_and_b32 s5, s5, 0xffff"); a("s_and_b32 s4, s4, 0xffffff00"); a("s_mov_b32 s6, L_end_code-" + KN); a("s_mov_b32 s7, 0x00020000")
    a("s_waitcnt lgkmcnt(0)")
    if P.get("wsoff"):
        a(f"s_add_u32 s{P_WS}, s{P_WS}, {P['wsoff'] << 20}"); a(f"s_addc_u32 s{P_WS+1}, s{P_WS+1}, 0")
    srd(a, 24, P_X, 0, 4 << 20)
    for i in range(4):
        a(f"buffer_load_dwordx4 v[{L+4*i}:{L+4*i+3}], v8, s[24:27], 0 offen offset:{128*i} nt")
    a("buffer_load_dword v10, v7, s[24:27], 0 offen nt")
    srd(a, S_FL, P_WS, WS_FLAG, FLAG_BYTES)
    a(f"s_mov_b32 s47, {EP_OFF}")
    a(f"buffer_load_dword v11, v9, s[{S_FL}:{S_FL+3}], s47 offen sc1")
    a("s_mov_b64 exec, 15")
    a(f"buffer_load_dword v{V_T+8}, v13, s[4:7], s48 offen")
    a("s_mov_b64 exec, -1")
    a("s_and_b32 s33, s2, 7")
    a("s_lshl_b32 s33, s33, 2")
    a("s_bfe_u32 s34, s2, 0x20003")
    a("s_add_u32 s33, s33, s34")
    a("s_lshr_b32 s34, s2, 5")
    a("s_movk_i32 s54, 6144"); a("s_movk_i32 s55, 7168")
    a("v_lshlrev_b32 v3, 4, v1")
    T = [f"v{V_T+i}" for i in range(8)]
    VPF = V_T + 11
    PFP = P.get("pfp", 7)
    a(f"s_movk_i32 s57, {(65536+6)//7}"); a("s_movk_i32 s49, 896")
    a("s_cmp_eq_u32 s32, 1")
    a(f"s_cselect_b32 s92, s{P_QKV}, s{P_G}"); a(f"s_cselect_b32 s93, s{P_QKV+1}, s{P_G+1}")
    a("s_cselect_b32 s56, 6, 7"); a(f"s_cselect_b32 s57, {(65536+5)//6}, s57")
    a("s_cselect_b32 s58, s54, s55")
    a("s_cselect_b32 s49, 256, s49")
    a("s_cselect_b32 s50, 1792, 0")
    a("s_cmp_eq_u32 s32, 3")
    a(f"s_cselect_b32 s92, s{P_U}, s92"); a(f"s_cselect_b32 s93, s{P_U+1}, s93")
    a("s_and_b32 s93, s93, 0xffff"); a("s_lshl_b32 s94, s58, 10"); a("s_mov_b32 s95, 0x00020000")
    a(f"v_mul_u32_u24 {T[0]}, s57, v1")
    a(f"v_lshrrev_b32 {T[0]}, 16, {T[0]}")
    a(f"v_mul_u32_u24 {T[1]}, s56, {T[0]}")
    a(f"v_sub_u32 {T[1]}, v1, {T[1]}")
    a("s_lshr_b32 s47, s2, 3")
    a(f"v_lshl_add_u32 {T[2]}, {T[0]}, 5, s47")
    a(f"v_mul_u32_u24 {T[2]}, s58, {T[2]}")
    a(f"v_lshl_add_u32 {T[2]}, {T[1]}, 7, {T[2]}")
    a(f"v_lshrrev_b32 {T[3]}, 1, {T[1]}")
    a(f"v_mul_u32_u24 {T[3]}, s50, {T[3]}")
    a("s_and_b32 s47, s2, 7"); a("s_mul_i32 s47, s47, s49")
    a(f"v_add3_u32 {T[2]}, {T[2]}, {T[3]}, s47")
    a("s_cmp_eq_u32 s32, 0")
    a(f"s_cselect_b32 s49, 0, {PFP}"); a("s_cselect_b32 s50, 0, 4")
    a(f"v_mov_b32 {T[3]}, {BIG}")
    a(f"v_cmp_gt_u32 vcc, s49, {T[0]}")
    a("s_nop 1")
    a(f"v_cndmask_b32 {T[4]}, {T[3]}, {T[2]}, vcc")
    a(f"v_cmp_gt_u32 vcc, s50, {T[0]}")
    a(f"buffer_load_dword v{V_T+8}, {T[4]}, s[92:95], 0 offen")
    a(f"v_cndmask_b32 v{VPF}, {T[3]}, {T[2]}, vcc")
    a(f"s_mul_i32 s59, s58, {PFP*32}")
    a("s_lshl_b32 s97, s58, 7")
    a("v_lshrrev_b32 v12, 2, v5")
    a("v_lshlrev_b32 v12, 17, v12")
    a("v_and_b32 v13, 3, v5")
    a("v_lshl_add_u32 v12, v13, 8, v12")
    a("v_lshrrev_b32 v13, 4, v6")
    a("v_lshl_add_u32 v12, v13, 10, v12")
    a("v_and_b32 v13, 15, v6")
    a("v_lshl_add_u32 v12, v13, 4, v12")
    a("s_lshl_b32 s47, s32, 20")
    a("v_add_u32 v12, s47, v12")
    srd(a, 8, P_WS, 0, 4 << 20)
    a("s_mov_b32 s60, 0x40000"); a("s_mov_b32 s61, 0x80000"); a("s_mov_b32 s62, 0xc0000")
    a("v_lshlrev_b32 v13, 5, v4")
    a(f"v_add_u32 v13, {XCH}, v13")
    a("s_lshl_b32 s47, s32, 3")
    a("v_add_u32 v14, s47, v13")
    a("s_waitcnt vmcnt(2)")
    stamp(a, P, 1)
    a(f"v_readfirstlane_b32 s{S_EP}, v11")
    a("v_lshlrev_b32 v10, 16, v10")
    F = 92
    for k in range(16):
        a(f"v_lshlrev_b32 v{F+2*k}, 16, v{L+k}")
        a(f"v_and_b32 v{F+2*k+1}, 0xffff0000, v{L+k}")
    a(f"s_add_u32 s{S_EP}, s{S_EP}, 1")
    a("v_mov_b32 v11, v10")
    a(f"v_pk_add_f32 v[16:17], v[{F}:{F+1}], v[10:11] neg_lo:[0,1] neg_hi:[0,1]")
    a("v_pk_mul_f32 v[18:19], v[16:17], v[16:17]")
    for k in range(2, 32, 2):
        a(f"v_pk_add_f32 v[20:21], v[{F+k}:{F+k+1}], v[10:11] neg_lo:[0,1] neg_hi:[0,1]")
        a("v_pk_add_f32 v[16:17], v[16:17], v[20:21]")
        a("v_pk_fma_f32 v[18:19], v[20:21], v[20:21], v[18:19]")
    a("v_add_f32 v16, v16, v17"); a("v_add_f32 v17, v18, v19")
    a("s_nop 0")
    a("v_add_f32_dpp v16, v16, v16 row_ror:8 row_mask:0xf bank_mask:0xf")
    a("v_add_f32_dpp v17, v17, v17 row_ror:8 row_mask:0xf bank_mask:0xf")
    for op in ("v_permlane16_swap_b32", "v_permlane32_swap_b32"):
        a("v_mov_b32 v18, v16"); a("v_mov_b32 v19, v17")
        a("s_nop 1")
        a(f"{op} v16, v18"); a(f"{op} v17, v19")
        a("s_nop 1")
        a("v_pk_add_f32 v[16:17], v[16:17], v[18:19]")
    a("ds_write_b64 v14, v[16:17]")
    a("s_waitcnt lgkmcnt(0)")
    a("s_barrier")
    a("ds_read_b128 v[20:23], v13")
    a("ds_read_b128 v[24:27], v13 offset:16")
    a("s_waitcnt lgkmcnt(0)")
    a("v_pk_add_f32 v[16:17], v[20:21], v[22:23]")
    a("v_pk_add_f32 v[18:19], v[24:25], v[26:27]")
    a("v_pk_add_f32 v[16:17], v[16:17], v[18:19]")
    a(f"v_mul_f32 v16, {1.0/1024!r}, v16")
    a(f"v_mul_f32 v17, {1.0/1024!r}, v17")
    a("v_fma_f32 v17, -v16, v16, v17")
    a("v_max_f32 v17, 0, v17")
    a("v_add_f32 v16, v16, v10")
    bf16_round(a, "v17", "v17")
    a(f"v_add_f32 v17, {1e-5!r}, v17")
    bf16_round(a, "v17", "v17")
    a("v_sqrt_f32 v17, v17")
    bf16_round(a, "v16", "v16")
    bf16_round(a, "v17", "v17")
    a("v_rcp_f32 v20, v17")
    a("v_mov_b32 v17, v16")
    a("v_mov_b32 v21, v20")
    for i in range(4):
        for d in range(4):
            o = F + 2*(4*i+d)
            a(f"v_pk_add_f32 v[{o}:{o+1}], v[{o}:{o+1}], v[16:17] neg_lo:[0,1] neg_hi:[0,1]")
            a(f"v_cvt_pk_bf16_f32 v18, v{o}, v{o+1}")
            a(f"v_lshlrev_b32 v{o}, 16, v18"); a(f"v_and_b32 v{o+1}, 0xffff0000, v18")
            a(f"v_pk_mul_f32 v[{o}:{o+1}], v[{o}:{o+1}], v[20:21]")
            a(f"v_cvt_pk_bf16_f32 v{L+4*i+d}, v{o}, v{o+1}")
        a(f"buffer_store_dwordx4 v[{L+4*i}:{L+4*i+3}], v12, s[8:11], {'0' if i == 0 else 's%d' % (59+i)} offen sc1")
    stamp(a, P, 2)
    a("s_cmp_eq_u32 s34, 0")
    a("s_cselect_b32 s35, 0, 1024")
    a("s_lshl_b32 s42, s34, 14")
    a("s_sub_u32 s42, s42, s35")
    a("s_lshl_b32 s43, s33, 6")
    a("s_mul_i32 s44, s33, 224")
    a("s_mov_b32 s28, 0"); a("s_mov_b32 s29, 0"); a("s_mov_b32 s30, 0")
    a("s_and_b32 s45, s33, 1")
    a("s_lshl_b32 s46, s45, 1")
    a("s_movk_i32 s52, 5462"); a("s_movk_i32 s53, 4682")
    srd(a, 12, P_QKV, "s43", 0); a(f"s_sub_u32 s14, {1024*6144}, s43")
    srd(a, 16, P_G, "s44", 0); a(f"s_sub_u32 s18, {1024*7168}, s44")
    srd(a, 20, P_U, "s44", 0); a(f"s_sub_u32 s22, {1024*7168}, s44")
    srd(a, 24, P_WS, WS_A2, A2_BYTES)
    a("s_lshl_b32 s47, s34, 5")
    a("s_sub_u32 s47, s47, 2")
    a(f"v_add_u32 v{V_T+12}, s47, v1")
    a(f"v_max_i32 v{V_T+12}, 0, v{V_T+12}")
    a(f"v_lshlrev_b32 v{V_T+12}, 2, v{V_T+12}")
    a("s_mov_b32 s31, 8")
    for r_ in range(V_DMA + 8, V_DMA + 10): a(f"v_mov_b32 v{r_}, {BIG}")
    for w in range(1, 4):
        a(f"s_cmp_eq_u32 s32, {w}")
        a(f"s_cbranch_scc1 L_g1_w{w}")
    def common(w):
        a("s_call_b64 s[62:63], L_common")
        g2_vsetup(a, w)
        a(f"v_lshlrev_b32 {T[0]}, 7, v1"); a(f"v_mov_b32 {T[1]}, {BIG}")
        a(f"v_cmp_gt_u32 vcc, {28 if w == 0 else 8}, v1"); a("s_nop 1")
        a(f"v_cndmask_b32 v{V_T+9}, {T[1]}, {T[0]}, vcc")
        if w == 0: srd(a, 48, P_D, 0, 3584*2048); a("s_mul_i32 s60, s2, 28672")
        else: srd(a, 48, P_WO, 0, 1024*2048); a("s_lshl_b32 s60, s2, 13")
        a("s_lshl_b32 s47, s34, 14"); a(f"s_add_u32 s47, s47, {w*4096}")
        a(f"v_add_u32 v{VS}, s47, v3")
        a("s_lshl_b32 s47, s45, 3")
        a(f"v_add_u32 v{VS+1}, s47, v{VS}")
    for w in range(4):
        a.label(f"L_g1_w{w}")
        vi = 0
        for g in dma_groups(w):
            for gi, s_ in enumerate(g):
                kind, idx = slot_info(s_)
                d = f"v{V_DMA+vi}"
                if kind == "A":
                    if idx == 0: a(f"v_mov_b32 {d}, v3")
                    else:
                        a(f"s_add_u32 s47, s35, {(idx-1)*1024 - gi*1024}")
                        a(f"v_add_u32 {d}, s47, v3")
                elif kind == "Q":
                    a(f"v_add_u32 {T[0]}, {idx*64}, v1")
                    a(f"v_mul_u32_u24 {T[1]}, s52, {T[0]}")
                    a(f"v_lshrrev_b32 {T[1]}, 16, {T[1]}")
                    a(f"v_mul_u32_u24 {T[2]}, 12, {T[1]}")
                    a(f"v_sub_u32 {T[2]}, {T[0]}, {T[2]}")
                    kperm_code(a, T[3], T[1], T[4])
                    a(f"v_mul_u32_u24 {T[3]}, s54, {T[3]}")
                    a(f"v_lshrrev_b32 {T[4]}, 2, {T[2]}")
                    a(f"v_lshl_add_u32 {T[3]}, {T[4]}, 11, {T[3]}")
                    a(f"v_lshrrev_b32 {T[4]}, 1, {T[1]}")
                    a(f"v_xor_b32 {T[4]}, {T[4]}, {T[2]}")
                    a(f"v_and_b32 {T[4]}, 2, {T[4]}")
                    a(f"v_and_or_b32 {T[4]}, {T[2]}, 1, {T[4]}")
                    a(f"v_lshl_add_u32 {T[3]}, {T[4]}, 4, {T[3]}")
                    a(f"v_subrev_u32 {d}, {gi*1024}, {T[3]}")
                else:
                    a(f"v_add_u32 {T[0]}, {idx*64}, v1")
                    a(f"v_mul_u32_u24 {T[1]}, s53, {T[0]}")
                    a(f"v_lshrrev_b32 {T[1]}, 16, {T[1]}")
                    a(f"v_mul_u32_u24 {T[2]}, 14, {T[1]}")
                    a(f"v_sub_u32 {T[2]}, {T[0]}, {T[2]}")
                    a(f"v_add_u32 {T[2]}, s46, {T[2]}")
                    a(f"v_subrev_u32 {T[4]}, 14, {T[2]}")
                    a(f"v_min_u32 {T[2]}, {T[2]}, {T[4]}")
                    kperm_code(a, T[3], T[1], T[4])
                    a(f"v_mul_u32_u24 {T[3]}, s55, {T[3]}")
                    a(f"v_lshl_add_u32 {T[3]}, {T[2]}, 4, {T[3]}")
                    a(f"v_subrev_u32 {d}, {gi*1024}, {T[3]}")
                vi += 1
        a(f"v_add_u32 v{V_RX}, {(1+4*w)*1024}, v3")
        a(f"v_add_u32 v{V_RX+1}, {(1+4*w)*1024 + 2*STG}, v3")
        a("s_waitcnt vmcnt(0)")
        a("s_barrier")
        stamp(a, P, 3)
        if w == 0:
            a("s_lshl_b32 s47, s2, 2")
            flag_store(a, "s47", "v15", "v16")
        srd(a, 8, P_WS, "s42", 0); a(f"s_sub_u32 s10, {4<<20}, s42")
        def dmas():
            for sl in range(3):
                for ins in dma_ops(w, sl):
                    for kind, txt in ins:
                        a(txt)
                        if kind == "m0": a("s_nop 0")
                for txt in soff_adv(w): a(txt)
        if w < 2:
            common(w)
            poll(a, V_T+12, T2+10, 34, P)
            stamp(a, P, 4)
            dmas()
        else:
            dmas()
            stamp(a, P, 4)
            common(w)
        n = len(dma_slots(w))
        a(f"s_waitcnt vmcnt({2*n})")
        a("s_barrier")
        stamp(a, P, 5)
        a(".p2align 6")
        a.label(f"L_g1_loop{w}")
        for st in range(4):
            if st == 0 and w >= 1:
                a(f"buffer_load_dword v{V_T+8}, v{VPF}, s[92:95], s59 offen")
                a("s_add_u32 s59, s59, s97")
            g1_segment(a, w, st, P)
            if st == 0 and w < 2:
                a(f"buffer_load_dword v{V_T+8}, v{V_T+9}, s[48:51], s60 offen")
                a(f"s_add_u32 s60, s60, {3584 if w == 0 else 1024}")
            if st == 0 and w == 3:
                a("s_cmp_lg_u32 s31, 1")
                a("s_cbranch_scc1 L_g1_nopfo")
                a("s_and_b32 s47, s2, 1"); a("s_lshl_b32 s47, s47, 20")
                a("s_lshr_b32 s56, s2, 3"); a("s_lshl_b32 s56, s56, 15"); a("s_add_u32 s47, s47, s56")
                a(f"buffer_load_dword v{V_T+8}, v{T2+7}, s[48:51], s47 offen")
                a.label("L_g1_nopfo")
            if st == 1:
                a("s_cmp_eq_u32 s31, 1")
                a("s_cbranch_scc1 L_g1_fin")
        a("s_sub_u32 s31, s31, 1")
        a(f"s_branch L_g1_loop{w}")
    a(".p2align 6")
    a.label("L_g1_fin")
    a("s_lshl_b32 s48, s33, 17")
    a("s_mul_i32 s49, s33, 7"); a("s_add_u32 s49, s49, 1"); a("s_lshr_b32 s49, s49, 1"); a("s_add_u32 s49, s49, 32"); a("s_lshl_b32 s49, s49, 17")
    a("s_add_u32 s50, s49, 0x20000")
    a("s_add_u32 s51, s49, 0x40000")
    a("s_lshr_b32 s52, s33, 1"); a("s_mul_i32 s52, s52, 7"); a("s_add_u32 s52, s52, 35"); a("s_lshl_b32 s52, s52, 17")
    a("s_waitcnt vmcnt(0)")
    a("s_barrier")
    rest = g1_final(a, P)
    stamp(a, P, 6)
    epilogue_g1(a, P, rest)
    g2_phase(a, P)
    if P.get("tl"):
        a("s_waitcnt vmcnt(0)")
        stamp(a, P, 15)
        srd(a, 92, P_WS, WS_TL, 65536)
        a("s_lshl_b32 s47, s2, 8")
        a("s_lshl_b32 s48, s32, 6")
        a("s_add_u32 s47, s47, s48")
        a("v_lshlrev_b32 v12, 2, v1")
        a("s_mov_b64 exec, 0xffff")
        if P.get("tl") == 2:
            srd(a, 92, P_DBG, 0, 256)
            a("s_mov_b64 exec, 1")
            a("v_not_b32 v255, v255")
            a("s_mov_b64 exec, 0xffff")
            a("buffer_atomic_umax v255, v12, s[92:95], 0 offen sc1")
        else:
            a("buffer_store_dword v255, v12, s[92:95], s47 offen")
    a.label("L_end")
    a("s_endpgm")
    a.label("L_common")
    a(f"v_mov_b32 v{V_RH}, v3")
    a(f"v_add_u32 v{V_RH+1}, {2*STG}, v3")
    a(f"v_lshrrev_b32 {T[0]}, 2, v1")
    a(f"v_and_b32 {T[1]}, 3, v1")
    a(f"v_lshlrev_b32 {T[1]}, 3, {T[1]}")
    a(f"v_mul_u32_u24 {T[2]}, 192, {T[0]}")
    a(f"v_add_u32 {T[2]}, {T[2]}, {T[1]}")
    a(f"v_and_b32 {T[3]}, 16, v1")
    a(f"v_lshlrev_b32 {T[3]}, 1, {T[3]}")
    a(f"v_add_u32 v{V_RQ}, {T[2]}, {T[3]}")
    a(f"v_add_u32 v{V_RQ+1}, {2*STG}, v{V_RQ}")
    a(f"v_xor_b32 {T[3]}, 32, {T[3]}")
    a(f"v_add_u32 v{V_RQ+2}, {T[2]}, {T[3]}")
    a(f"v_add_u32 v{V_RQ+3}, {2*STG}, v{V_RQ+2}")
    a(f"v_mul_u32_u24 {T[2]}, 224, {T[0]}")
    a(f"v_add3_u32 v{V_RG}, {T[2]}, {T[1]}, s63") if False else None
    a(f"v_add_u32 v{V_RG}, {T[2]}, {T[1]}")
    a(f"v_add_u32 v{V_RG}, {OFF_G}, v{V_RG}")
    a(f"v_add_u32 v{V_RG+1}, {2*STG}, v{V_RG}")
    for r_ in range(NA): a(f"v_accvgpr_write_b32 a{r_}, 0")
    for r_ in range(4, V_DMA, 2): a(f"v_mov_b64 v[{r_}:{r_+1}], 0")
    a("s_setpc_b64 s[62:63]")
    a.label("L_end_code")

def epilogue_g1(a, P, rest):
    QP, KP, VP0, VP1, HP, B, SH, ONES, S = 4, 32, 52, 62, 20, 22, 28, 72, 104
    T = V_T
    def pack(dst, src):
        for t in pack_t(dst, src): a(t)
    for tb in range(4):
        pack(KP + 4 + tb*4, V_K + tb*8); pack(KP + 4 + tb*4 + 2, V_K + tb*8 + 4)
    for tb in range(4):
        pack(VP0 + (tb+1)*2, V_V + tb*8); pack(VP1 + (tb+1)*2, V_V + tb*8 + 4)
    a("s_lshl_b32 s47, s32, 11")
    a(f"s_add_u32 s47, s47, {XCH + 2048}")
    a(f"v_add_u32 v{T}, s47, v3")
    a(f"v_lshrrev_b32 v{T+1}, 1, v3")
    a(f"v_add_u32 v{T+2}, s47, v{T+1}")
    a(f"ds_write_b128 v{T}, v[{KP+16}:{KP+19}]")
    a(f"ds_write_b64 v{T+2}, v[{VP0+8}:{VP0+9}] offset:1024")
    a(f"ds_write_b64 v{T+2}, v[{VP1+8}:{VP1+9}] offset:1536")
    for tb in range(4):
        pack(QP + tb*4, V_Q + tb*8); pack(QP + tb*4 + 2, V_Q + tb*8 + 4)
    pack(HP, V_H)
    a("s_lshl_b32 s57, s32, 3")
    a("s_lshl_b32 s58, s32, 9")
    a("s_cmp_lt_u32 s32, 2")
    a("s_cselect_b32 s56, 4, 3")
    a("s_cselect_b32 s57, s57, s58")
    a(f"s_add_u32 s57, s57, {XCH}")
    a(f"v_lshlrev_b32 v{T+3}, s56, v1")
    a(f"v_add_u32 v{T+3}, s57, v{T+3}")
    a(f"ds_write_b64 v{T+3}, v[{HP}:{HP+1}]")
    g2_ssetup(a)
    a("s_waitcnt lgkmcnt(0)")
    a("s_barrier")
    a(f"ds_read_b128 v[{KP}:{KP+3}], v{T} offset:63488")
    a.lines.pop()
    a(f"v_subrev_u32 v{T}, 2048, v{T}")
    a(f"v_subrev_u32 v{T+2}, 2048, v{T+2}")
    a(f"ds_read_b128 v[{KP}:{KP+3}], v{T}")
    a(f"ds_read_b64 v[{VP0}:{VP0+1}], v{T+2} offset:1024")
    a(f"ds_read_b64 v[{VP1}:{VP1+1}], v{T+2} offset:1536")
    a("s_cmp_lt_u32 s32, 2")
    a("s_cbranch_scc1 L_epi_nob")
    for sl in range(3):
        for ins in g2_dma("B", sl):
            for kind, txt in ins:
                a(txt)
                if kind == "m0": a("s_nop 0")
        for t in g2_adv("B"): a(t)
    a.label("L_epi_nob")
    for t in rest: a(t)
    NEG = "0xf149f2ca"
    a(f"v_and_b32 v{T}, 15, v1")
    a(f"v_lshrrev_b32 v{T+1}, 4, v1")
    a(f"v_and_b32 v{T+2}, 1, v1")
    a(f"v_lshlrev_b32 v{SH}, 4, v{T+2}")
    a(f"v_lshl_add_u32 v{T+1}, v{T+1}, 2, v{T+2}")
    a(f"v_add_u32 v{T+3}, 2, v{T+1}")
    a(f"v_add_u32 v{T+4}, 2, v{T}")
    a(f"v_mov_b32 v{T+5}, {NEG}")
    a(f"v_cmp_eq_u32 s[56:57], 1, v{T+2}")
    a(f"v_cmp_le_u32 s[4:5], v{T+1}, v{T}")
    a(f"v_cmp_le_u32 s[6:7], v{T+3}, v{T}")
    a(f"v_cmp_ge_u32 s[42:43], v{T+1}, v{T+4}")
    a(f"v_cmp_ge_u32 s[44:45], v{T+3}, v{T+4}")
    for i in range(4): a(f"v_mov_b32 v{ONES+i}, 0x3f803f80")
    a(f"v_cndmask_b32 v{B}, v{T+5}, 0, s[4:5]")
    a(f"v_cndmask_b32 v{B+1}, v{T+5}, 0, s[6:7]")
    a(f"v_cndmask_b32 v{B+2}, v{T+5}, 0, s[42:43]")
    a(f"v_cndmask_b32 v{B+3}, v{T+5}, 0, s[44:45]")
    a("s_or_b32 s47, s34, s32")
    a("s_cmp_eq_u32 s47, 0")
    a("s_cselect_b64 vcc, -1, 0")
    a(f"v_cndmask_b32 v{B+4}, v{B+2}, v{T+5}, vcc")
    a(f"v_cndmask_b32 v{B+5}, v{B+3}, v{T+5}, vcc")
    a("s_waitcnt lgkmcnt(0)")
    U = lambda tb: S + tb*16
    C = (32 ** -0.5) * math.log2(math.e)
    a(f"s_mov_b32 s47, {hex(f32bits(C))}")
    for tb in (1, 2, 3, 0):
        u = U(tb)
        a(f"v_mfma_f32_16x16x32_bf16 v[{u}:{u+3}], v[{KP+tb*4}:{KP+tb*4+3}], v[{QP+tb*4}:{QP+tb*4+3}], 0")
        a(f"v_mfma_f32_16x16x32_bf16 v[{u+4}:{u+7}], v[{KP+tb*4+4}:{KP+tb*4+7}], v[{QP+tb*4}:{QP+tb*4+3}], 0")
    a("s_nop 2")
    for tb in (1, 2, 3, 0):
        u = U(tb)
        for k in range(4): a(f"v_cndmask_b32 v{u+8+k}, v{u+2*k}, v{u+2*k+1}, s[56:57]")
        pb = B+4 if tb == 0 else B+2
        a(f"v_fma_f32 v{u+8}, v{u+8}, s47, v{pb}")
        a(f"v_fma_f32 v{u+9}, v{u+9}, s47, v{pb+1}")
        a(f"v_fma_f32 v{u+10}, v{u+10}, s47, v{B}")
        a(f"v_fma_f32 v{u+11}, v{u+11}, s47, v{B+1}")
        a(f"v_max3_f32 v{u+12}, v{u+8}, v{u+9}, v{u+10}")
        a(f"v_max_f32 v{u+12}, v{u+12}, v{u+11}")
        a(f"v_mov_b32 v{u+13}, v{u+12}")
    for op in ("v_permlane32_swap_b32", "v_permlane16_swap_b32"):
        a("s_nop 1")
        for tb in (1, 2, 3, 0): a(f"{op} v{U(tb)+12}, v{U(tb)+13}")
        for tb in (1, 2, 3, 0): a(f"v_max_f32 v{U(tb)+12}, v{U(tb)+12}, v{U(tb)+13}")
        if op.startswith("v_permlane32"):
            for tb in (1, 2, 3, 0): a(f"v_mov_b32 v{U(tb)+13}, v{U(tb)+12}")
    for tb in (1, 2, 3, 0):
        u = U(tb)
        for k in range(4): a(f"v_sub_f32 v{u+8+k}, v{u+8+k}, v{u+12}")
        for k in range(4): a(f"v_exp_f32 v{u+8+k}, v{u+8+k}")
        a("s_nop 0")
        for k in range(4): a(f"v_cvt_pk_bf16_f32 v{u+8+k}, v{u+8+k}, 0")
        for k in range(4): a(f"v_lshlrev_b32 v{u+8+k}, v{SH}, v{u+8+k}")
        a("s_nop 1")
        a(f"v_mfma_f32_16x16x32_bf16 v[{u+12}:{u+15}], v[{ONES}:{ONES+3}], v[{u+8}:{u+11}], 0")
        a(f"v_mfma_f32_16x16x32_bf16 v[{u}:{u+3}], v[{VP0+tb*2}:{VP0+tb*2+3}], v[{u+8}:{u+11}], 0")
        a(f"v_mfma_f32_16x16x32_bf16 v[{u+4}:{u+7}], v[{VP1+tb*2}:{VP1+tb*2+3}], v[{u+8}:{u+11}], 0")
    for tb in (1, 2, 3, 0):
        u = U(tb)
        a(f"v_rcp_f32 v{u+12}, v{u+12}")
        a("s_nop 0")
        a(f"v_mov_b32 v{u+13}, v{u+12}")
        for k in range(0, 8, 2): a(f"v_pk_mul_f32 v[{u+k}:{u+k+1}], v[{u+k}:{u+k+1}], v[{u+12}:{u+13}]")
        pack(u+8, u); pack(u+10, u+4)
        a(f"buffer_store_dwordx4 v[{u+8}:{u+11}], v{VS}, s[24:27], s48 offen offset:{tb*1024} {P.get('a2s', 'sc1')}")
    a("s_lshl_b32 s53, s34, 1"); a("s_lshr_b32 s47, s32, 1"); a("s_add_u32 s53, s53, s47"); a("s_lshl_b32 s53, s53, 1")
    a("s_lshr_b32 s47, s33, 4"); a("s_add_u32 s53, s53, s47"); a("s_lshl_b32 s53, s53, 7")
    a("s_and_b32 s47, s33, 15"); a("s_lshl_b32 s47, s47, 3"); a("s_add_u32 s53, s53, s47")
    a("s_and_b32 s47, s32, 1"); a("s_lshl_b32 s47, s47, 2"); a("s_add_u32 s53, s53, s47")
    a(f"s_add_u32 s53, s53, {F2_OFF}")
    a("s_lshl_b32 s37, s2, 2"); a("s_add_u32 s37, s37, s32"); a("s_lshl_b32 s37, s37, 7")

def g2_phase(a, P):
    stamp(a, P, 7)
    a("s_nop 1")
    for r_ in list(range(4, 52, 2)) + list(range(64, 104, 2)): a(f"v_mov_b64 v[{r_}:{r_+1}], 0")
    a("s_mov_b32 s31, 9")
    a("s_waitcnt vmcnt(0)")
    stamp(a, P, 8)
    flag_store(a, "s53", f"v{T2}", f"v{T2+1}")
    for r_ in range(104, 144, 2): a(f"v_mov_b64 v[{r_}:{r_+1}], 0")
    a("s_cmp_ge_u32 s32, 2")
    a("s_cbranch_scc1 L_g2_B")
    for role in ("A", "B"):
        if role == "B": a.label("L_g2_B")
        if role == "A":
            poll(a, T2+5, T2+10, 32, P)
            stamp(a, P, 9)
            for sl in range(3):
                for ins in g2_dma("A", sl):
                    for kind, txt in ins:
                        a(txt)
                        if kind == "m0": a("s_nop 0")
                for t in g2_adv("A"): a(t)
            a("s_waitcnt vmcnt(16)")
        a("s_barrier")
        stamp(a, P, 10)
        a(".p2align 6")
        a.label(f"L_g2_loop{role}")
        if role == "B" and P.get("g2pf", 1):
            a("s_cmp_lg_u32 s32, 2")
            a("s_cbranch_scc1 L_g2_nopfb")
            a("s_mov_b64 exec, 0xffffffff")
            a(f"buffer_load_dword v{T2+8}, v{T2+7}, s[92:95], s59 offen")
            a("s_mov_b64 exec, -1")
            a(f"s_add_u32 s59, s59, {256*2048}")
            a.label("L_g2_nopfb")
        for st in range(4): g2_segment(a, role, st, P)
        a("s_sub_u32 s31, s31, 1")
        a("s_cmp_lg_u32 s31, 0")
        a(f"s_cbranch_scc1 L_g2_loop{role}")
        if role == "A": a("s_branch L_g2_fin")
    a.label("L_g2_fin")
    T = T2; X = T2 + 9
    srd(a, 16, P_WS, WS_PART, 8 << 20)
    srd(a, 24, P_X, 0, 4 << 20)
    srd(a, 20, P_OUT, 0, 4 << 20)
    a("s_lshl_b32 s55, s2, 15"); a("s_lshl_b32 s56, s32, 13"); a("s_add_u32 s55, s55, s56")
    a("s_add_u32 s57, s55, 4096")
    a("s_mov_b32 s54, 32768")
    for cb in range(4):
        for rho in (2, 3): a(g2_mf(rho, cb, 1))
    own = [g2_mf(rho, cb, 1) for cb in range(4) for rho in (0, 1)]
    sts = [(cb, rho) for cb in range(4) for rho in (2, 3)]
    for i, m in enumerate(own):
        a(m)
        if i >= 2:
            pass
    stamp(a, P, 11)
    for cb, rho in sts:
        b = (rho - 2) * 4 + cb
        c = ACC2 + (8 + b) * 4
        a(f"buffer_store_dwordx4 v[{c}:{c+3}], v3, s[16:19], {'s55' if b < 4 else 's57'} offen offset:{(b%4)*1024} sc1")
    for rho in range(2):
        for pr in range(2):
            d = 4 + (rho*2+pr)*4
            a(f"buffer_load_dwordx4 v[{d}:{d+3}], v{X}, s[24:27], {'s54' if rho else '0'} offen offset:{pr*64}")
    a(f"s_add_u32 s53, s37, {F3_OFF}")
    a("s_xor_b32 s58, s53, 512")
    a(f"v_mov_b32 v{T+5}, s58")
    a("s_waitcnt vmcnt(4)")
    stamp(a, P, 12)
    flag_store(a, "s53", f"v{T+1}", f"v{T+2}")
    poll(a, T+5, T+10, 1, P)
    stamp(a, P, 13)
    a("s_xor_b32 s55, s55, 32768"); a("s_xor_b32 s57, s57, 32768")
    for b in range(8):
        c = ACC2 + (8 + b) * 4
        a(f"buffer_load_dwordx4 v[{c}:{c+3}], v3, s[16:19], {'s55' if b < 4 else 's57'} offen offset:{(b%4)*1024} sc1")
    for rho in range(2):
        for pr in range(2):
            i = rho*2+pr
            a(f"s_waitcnt vmcnt({6 - i})")
            c0 = ACC2 + (rho*4 + pr*2)*4; c1 = c0 + 4
            p0 = ACC2 + (8 + rho*4 + pr*2)*4
            for k in range(0, 8, 2): a(f"v_pk_add_f32 v[{c0+k}:{c0+k+1}], v[{c0+k}:{c0+k+1}], v[{p0+k}:{p0+k+1}]")
            a("s_nop 1")
            for k in range(4): a(f"v_permlane16_swap_b32 v{c0+k}, v{c1+k}")
            xd = 4 + i*4
            for k in range(4):
                a(f"v_lshlrev_b32 v{T+2}, 16, v{xd+k}")
                a(f"v_and_b32 v{T+3}, 0xffff0000, v{xd+k}")
                a(f"v_pk_add_f32 v[{c0+2*k}:{c0+2*k+1}], v[{c0+2*k}:{c0+2*k+1}], v[{T+2}:{T+3}]")
                a(f"v_cvt_pk_bf16_f32 v{xd+k}, v{c0+2*k}, v{c0+2*k+1}")
            a(f"buffer_store_dwordx4 v[{xd}:{xd+3}], v{X}, s[20:23], {'s54' if rho else '0'} offen offset:{pr*64}")
    stamp(a, P, 14)
    a("s_or_b32 s47, s2, s32")
    a("s_cmp_lg_u32 s47, 0")
    a("s_cbranch_scc1 L_noep")
    for k in range(4):
        a(f"v_lshlrev_b32 v{T+5}, 2, v1")
        a(f"v_add_u32 v{T+5}, {k*256}, v{T+5}")
        a("s_waitcnt vmcnt(0)")
        poll(a, T+5, T+10, 64, P, depth=1)
    a(f"s_mov_b32 s53, {EP_OFF}")
    flag_store(a, "s53", f"v{T+1}", f"v{T+2}")
    a.label("L_noep")

if __name__ == "__main__":
    out = sys.argv[1]
    P = json.loads(sys.argv[2]) if len(sys.argv) > 2 else {}
    a = Asm()
    gen(a, P)
    hdr = "".join(open("cdna_kernels/" + NAME + ".s.ref").readlines()[:11])
    open(out, "w").write(a.text(hdr))
```

```python
import sys, math, struct, json
from asmlib import *

def f32bits(x): return struct.unpack("<I", struct.pack("<f", x))[0]

WS_A2 = 4 << 20
A2_BYTES = 144 * 128 * 1024
WS_PART = 24 << 20
WS_FLAG = 40 << 20
F1_OFF, F2_OFF, F3_OFF, EP_OFF = 0, 0x1000, 0x10000, 0x30000
FLAG_BYTES = 0x30080
WS_TL = 48 << 20
BIG = "0x7fffff00"

P_X, P_QKV, P_WO, P_BX, P_G, P_U, P_D, P_OUT, P_DBG, P_WS = 64, 66, 68, 70, 72, 74, 76, 78, 80, 82
S_EP = 96
S_FL = 84

def srd(a, d, p, off, nbytes):
    if off == 0:
        a(f"s_mov_b32 s{d}, s{p}"); a(f"s_and_b32 s{d+1}, s{p+1}, 0xffff")
    else:
        a(f"s_add_u32 s{d}, s{p}, {off}"); a(f"s_addc_u32 s{d+1}, s{p+1}, 0"); a(f"s_and_b32 s{d+1}, s{d+1}, 0xffff")
    a(f"s_mov_b32 s{d+2}, {nbytes}"); a(f"s_mov_b32 s{d+3}, 0x00020000")

def bf16_round(a, dst, src):
    a(f"v_cvt_pk_bf16_f32 {dst}, {src}, {src}")
    a(f"v_lshlrev_b32 {dst}, 16, {dst}")

_pid = [0]
def set_exec(a, nl):
    if nl <= 32: a(f"s_mov_b64 exec, {hex((1 << nl) - 1)}")
    else:
        a("s_mov_b32 exec_lo, -1"); a(f"s_mov_b32 exec_hi, {hex((1 << (nl - 32)) - 1)}")
def poll(a, vaddr, vt, nl, P, depth=None):
    i = _pid[0]; _pid[0] += 1
    D = depth or P.get("pd", 2)
    ld = lambda k: a(f"buffer_load_dword v{vt+k}, v{vaddr}, s[{S_FL}:{S_FL+3}], 0 offen sc1")
    set_exec(a, nl)
    a("s_mov_b32 s47, 0x20000")
    for k in range(D):
        ld(k)
        if k < D - 1: a(f"s_sleep {P.get('psl', 6)}")
    a.label(f"L_poll{i}")
    for k in range(D):
        a(f"s_waitcnt vmcnt({D-1})")
        a(f"v_cmp_ne_u32 vcc, s{S_EP}, v{vt+k}")
        a("s_nop 4")
        a(f"s_cbranch_vccz L_pollok{i}")
        ld(k)
    a("s_sub_u32 s47, s47, 1")
    a("s_cmp_lg_u32 s47, 0")
    a(f"s_cbranch_scc1 L_poll{i}")
    a("s_branch L_end")
    a.label(f"L_pollok{i}")
    a("s_mov_b64 exec, -1")

def flag_store(a, soff, vz, ve):
    a(f"v_mov_b32 {vz}, 0"); a(f"v_mov_b32 {ve}, s{S_EP}")
    a("s_mov_b64 exec, 1")
    a(f"buffer_store_dword {ve}, {vz}, s[{S_FL}:{S_FL+3}], {soff} offen sc1")
    a("s_mov_b64 exec, -1")

def stamp(a, P, i):
    if P.get("tl"):
        a("s_memrealtime s[88:89]")
        a("s_waitcnt lgkmcnt(0)")
        a(f"v_writelane_b32 v255, s88, {i}")

STG = 37888
OFF_Q = 17408
OFF_G = OFF_Q + 6144
XCH = 4 * STG
NRING = 8
A_X = [112, 132]
A_W = 152
A_UP = 184
NA = 232
V_Q, V_K, V_V, V_H, V_UP = 4, 36, 68, 100, 104
V_DMA, V_RX, V_RH, V_RQ, V_RG, V_T = 168, 178, 180, 182, 186, 188
V_E = 202
NV = 256
NUPV = 4

def dma_slots(w): return list(range(*[(0,9),(9,17),(17,27),(27,37)][w]))
def slot_info(s):
    if s < 17: return ("A", s)
    if s < 23: return ("Q", s-17)
    if s < 30: return ("G", s-23)
    return ("U", s-30)
def dma_groups(w):
    sl = dma_slots(w)
    if w == 0: return [[0], [1,2,3,4], [5,6,7,8]]
    return [sl[i:i+4] for i in range(0, len(sl), 4)]
CBS = [(t,j) for j in range(7) for t in ("g","u")] + [("k",0),("k",1),("v",0),("v",1),("q",0),("q",1)]
HALO0 = 14
def rr(p, n): return f"{p}[{n}:{n+3}]"
def acc_reg(cb, tb):
    t, j = CBS[cb]
    if t == "q": return rr("v", V_Q+(tb*2+j)*4)
    if t == "k": return rr("v", V_K+(tb*2+j)*4)
    if t == "v": return rr("v", V_V+(tb*2+j)*4)
    if t == "g": return rr("a", (j*4+tb)*4)
    if j < NUPV: return rr("v", V_UP+(j*4+tb)*4)
    return rr("a", A_UP+((j-NUPV)*4+tb)*4)
def w_read(cb, st, h, slot):
    t, j = CBS[cb]
    hi = st >= 2
    stoff = (st - 2*hi) * STG
    d = A_W + slot*4 + h*2
    if t in "qkv":
        base = V_RQ + 2*j + hi
        off = stoff + OFF_Q + h*3072 + "qkv".index(t)*64
    else:
        base = V_RG + hi
        off = stoff + (0 if t == "g" else 7168) + h*3584 + j*32
    assert off < 65536
    return f"ds_read_b64_tr_b16 a[{d}:{d+1}], v{base} offset:{off}"
def x_read(i, st, xs):
    hi = st >= 2
    stoff = (st - 2*hi) * STG
    d = A_X[xs] + i*4
    if i < 4: return f"ds_read_b128 a[{d}:{d+3}], v{V_RX+hi} offset:{stoff + i*1024}"
    return f"ds_read_b128 a[{d}:{d+3}], v{V_RH+hi} offset:{stoff}"
def mfma(cb, tb, xs, slot, halo=False):
    t, j = CBS[cb]
    wv = rr("a", A_W+slot*4)
    xv = rr("a", A_X[xs]+(4 if halo else tb)*4)
    acc = rr("v", V_H) if halo else acc_reg(cb, tb)
    if t == "v": return f"v_mfma_f32_16x16x32_bf16 {acc}, {xv}, {wv}, {acc}"
    return f"v_mfma_f32_16x16x32_bf16 {acc}, {wv}, {xv}, {acc}"
SRDN = {"A": 8, "Q": 12, "G": 16, "U": 20}
SOFF = {"A": 28, "Q": 29, "G": 30, "U": 30}
def dma_ops(w, buf):
    ops = []; vi = 0
    for g in dma_groups(w):
        for gi, s in enumerate(g):
            kind, _ = slot_info(s)
            ins = []
            if gi == 0: ins.append(("m0", f"s_mov_b32 m0, {buf*STG + g[0]*1024}"))
            sc = "sc1 " if kind == "A" else ""
            ins.append(("dma", f"buffer_load_dwordx4 v{V_DMA+vi}, s[{SRDN[kind]}:{SRDN[kind]+3}], s{SOFF[kind]} offen offset:{gi*1024} {sc}lds"))
            ops.append(ins); vi += 1
    return ops
def soff_adv(w):
    kinds = sorted(set(SOFF[slot_info(s)[0]] for s in dma_slots(w)))
    inc = {28: 131072, 29: 32*6144, 30: 32*7168}
    return [f"s_add_u32 s{k}, s{k}, {inc[k]}" for k in kinds]

def emit_sched(a, mf, fill, side=None, rate=2):
    lds = []; done = -1
    side = list(side or [])
    for i, (txt, need) in enumerate(mf):
        nf = 0
        for e in fill[i]:
            a(e[2]); nf += 1
            if e[0] in "WX": lds.append((e[0], e[1]))
        if need:
            last = max(k for k, e in enumerate(lds) if e in need)
            if last > done:
                nw = len(lds) - 1 - last
                a(f"s_waitcnt lgkmcnt({min(nw, 15)})"); nf += 1
                done = last if nw <= 15 else len(lds) - 16
        while side and side[0][0] <= i and nf < rate:
            a(side.pop(0)[1]); nf += 1
        a(txt)
    return side

TAIL = 4
def tail_mf(w, xs, prevbase):
    mf = []
    for cb in range(20 - TAIL, 20):
        for tb in range(4): mf.append((mfma(cb, tb, xs, (prevbase + cb) % NRING), None))
        if w is None and HALO0 <= cb < HALO0 + 4:
            _pid[0] += 1
            mf.append((f"s_cmp_lg_u32 s32, {cb-HALO0}\ns_cbranch_scc1 L_h{_pid[0]}\n" + mfma(cb, 0, xs, (prevbase + cb) % NRING, halo=True) + f"\nL_h{_pid[0]}:", None))
        elif cb == HALO0 + (w if w is not None else -99):
            mf.append((mfma(cb, 0, xs, (prevbase + cb) % NRING, halo=True), None))
    return mf

def g1_segment(a, w, st, P):
    n = len(dma_slots(w))
    xs = st & 1
    ringbase = (st * 20) % NRING
    prevbase = ((st - 1) * 20) % NRING
    mf = tail_mf(w, xs ^ 1, prevbase)
    ntail = len(mf)
    cbstart = {}
    for cb in range(0, 20 - TAIL):
        cbstart[cb] = len(mf)
        for tb in range(4):
            mf.append((mfma(cb, tb, xs, (ringbase + cb) % NRING), [("W", cb)] + ([("X", tb)] if cb == 0 else [])))
        if cb == HALO0 + w:
            mf.append((mfma(cb, 0, xs, (ringbase + cb) % NRING, halo=True), None))
    NM = len(mf)
    fill = [[] for _ in range(NM + 1)]
    early = [("X", 0, x_read(0, st, xs)), ("W", 0, w_read(0, st, 0, ringbase % NRING)), ("W", 0, w_read(0, st, 1, ringbase % NRING))]
    early += [("X", i, x_read(i, st, xs)) for i in (1, 2, 3)]
    for cb in range(1, TAIL):
        early += [("W", cb, w_read(cb, st, h, (ringbase + cb) % NRING)) for h in (0, 1)]
        if cb == 1: early += [("X", 4, x_read(4, st, xs))]
    for i, e in enumerate(early): fill[min(i, ntail - 1)].append(e)
    LASTB = P.get("lastb", 20 - TAIL - 3)
    rest = list(range(TAIL, 20))
    for idx, cb in enumerate(rest):
        ib = (idx * (LASTB + 1)) // len(rest)
        if cb - NRING >= 0: ib = max(ib, cb - NRING + 1)
        base = cbstart[ib]
        used = any(x[0] == "W" for x in fill[base + 1])
        cand = [base + 1, base + 3] if not used else [base, base + 2]
        fill[cand[0]].append(("W", cb, w_read(cb, st, 0, (ringbase + cb) % NRING)))
        fill[cand[1]].append(("W", cb, w_read(cb, st, 1, (ringbase + cb) % NRING)))
    ops = dma_ops(w, (st + 3) % 4)
    d0 = P.get("dma0", 2); d1 = P.get("dma1", NM - 8)
    for i, ins in enumerate(ops):
        pos = d0 + (i * (d1 - d0)) // len(ops)
        for kind, txt in ins: fill[max(pos - 1, 0) if kind == "m0" else pos].append(("S", 0, txt))
    for txt in soff_adv(w): fill[NM - 2].append(("S", 0, txt))
    emit_sched(a, mf, fill)
    a(f"s_waitcnt vmcnt({2*n}) lgkmcnt(0)")
    a("s_barrier")

def pack_t(dst, src):
    return [f"v_cvt_pk_bf16_f32 v{dst}, v{src}, v{src+1}", f"v_cvt_pk_bf16_f32 v{dst+1}, v{src+2}, v{src+3}"]
def glu_t(j, tb, dst, tmp):
    ng = (j*4 + tb)*4
    r = [f"v_accvgpr_read_b32 v{tmp+k}, a{ng+k}" for k in range(4)]
    if j < NUPV:
        u = V_UP + (j*4+tb)*4
    else:
        u = tmp + 4
        nu = A_UP + ((j-NUPV)*4+tb)*4
        r += [f"v_accvgpr_read_b32 v{u+k}, a{nu+k}" for k in range(4)]
    r += [f"v_pk_mul_f32 v[{tmp}:{tmp+1}], v[{tmp}:{tmp+1}], v[{u}:{u+1}]", f"v_pk_mul_f32 v[{tmp+2}:{tmp+3}], v[{tmp+2}:{tmp+3}], v[{u+2}:{u+3}]"]
    return r + pack_t(dst, tmp)
VS = V_T + 6

def g1_final(a, P):
    prevbase = (1 * 20) % NRING
    mf = tail_mf(None, 1, prevbase)
    ntail = len(mf)
    seq = []
    for p in range(0, 20, 2):
        seq += [(p, 2), (p+1, 2), (p, 3), (p+1, 3)]
    fstart = {}; fend = {}
    for f, (cb, st) in enumerate(seq):
        xs = st & 1
        fstart[f] = len(mf)
        for tb in range(4):
            need = [("W", f)] + ([("X", st*8+tb)] if cb == 0 else [])
            mf.append((mfma(cb, tb, xs, f % NRING), need))
        if HALO0 <= cb < HALO0 + 4:
            _pid[0] += 1
            mf.append((f"s_cmp_lg_u32 s32, {cb-HALO0}\ns_cbranch_scc1 L_h{_pid[0]}\n" + mfma(cb, 0, xs, f % NRING, halo=True) + f"\nL_h{_pid[0]}:", None))
        fend[f] = len(mf)
    NM = len(mf)
    fill = [[] for _ in range(NM + 1)]
    R = lambda f, h: ("W", f, w_read(seq[f][0], seq[f][1], h, f % NRING))
    early = [("X", 16, x_read(0, 2, 0)), R(0, 0), R(0, 1)] + [("X", 16+i, x_read(i, 2, 0)) for i in (1, 2, 3)]
    early += [R(1, 0), R(1, 1), ("X", 20, x_read(4, 2, 0)), R(2, 0), R(2, 1), R(3, 0), R(3, 1)]
    for i, e in enumerate(early): fill[min(i, ntail - 1)].append(e)
    for i in range(5): fill[ntail + i // 2].append(("X", 24+i, x_read(i, 3, 1)))
    LEAD = 5
    for f in range(4, 40):
        ib = max(f - LEAD, 0)
        if f - NRING >= 0: ib = max(ib, f - NRING + 1)
        base = fstart[ib]
        used = any(x[0] == "W" for x in fill[base + 1])
        cand = [base + 1, base + 3] if not used else [base + 2, base + 3]
        if ib == 0: cand = [c + 2 for c in cand]
        fill[cand[0]].append(R(f, 0)); fill[cand[1]].append(R(f, 1))
    side = []
    cnt = 0
    for jp in range(3):
        ready = fend[(2*jp+1)*4 + 3] + 6
        for tb in range(4):
            o = V_E + 8 + (cnt % 2)*4
            ins = glu_t(2*jp, tb, o, V_E) + glu_t(2*jp+1, tb, o+2, V_E) + [f"buffer_store_dwordx4 v[{o}:{o+3}], v{VS}, s[24:27], s{49+jp} offen offset:{tb*1024} {P.get('a2s', 'sc1')}"]
            side += [(ready, t) for t in ins]; cnt += 1
    ready = fend[6*4 + 3] + 6
    for tb in range(4):
        o = V_E + 8 + (cnt % 2)*4
        ins = glu_t(6, tb, o, V_E) + [f"buffer_store_dwordx2 v[{o}:{o+1}], v{VS+1}, s[24:27], s52 offen offset:{tb*1024} {P.get('a2s', 'sc1')}"]
        side += [(ready, t) for t in ins]; cnt += 1
    rest = emit_sched(a, mf, fill, side, rate=P.get("rate", 2))
    return [t for _, t in rest]

def kperm_code(a, dst, s, t):
    a(f"v_bfe_u32 {dst}, {s}, 2, 2")
    a(f"v_lshlrev_b32 {dst}, 3, {dst}")
    a(f"v_lshrrev_b32 {t}, 4, {s}")
    a(f"v_lshl_add_u32 {dst}, {t}, 2, {dst}")
    a(f"v_and_b32 {t}, 3, {s}")
    a(f"v_add_u32 {dst}, {dst}, {t}")

STG2 = 32768
ACC2 = 64
XA = [4, 20]
WB = [36, 128]
V2_D = 220
R_A = 228
R_B = 232
T2 = 240

def g2_xread(rho, st, sl, xs):
    hi = st >= 2
    off = (st - 2*hi) * STG2 + sl * 8192 + (rho & 1) * 1024
    d = XA[xs] + rho * 4
    return f"ds_read_b128 v[{d}:{d+3}], v{R_A + (rho >> 1) * 2 + hi} offset:{off}"
def g2_wread(cb, h, st, sl, xs):
    hi = st >= 2
    off = (st - 2*hi) * STG2 + sl * 8192 + h * 4096
    d = WB[xs] + cb * 4 + h * 2
    return f"ds_read_b64_tr_b16 v[{d}:{d+1}], v{R_B + cb * 2 + hi} offset:{off}"
def g2_mf(rho, cb, xs):
    c = ACC2 + (rho * 4 + cb) * 4
    return f"v_mfma_f32_16x16x32_bf16 v[{c}:{c+3}], v[{WB[xs]+cb*4}:{WB[xs]+cb*4+3}], v[{XA[xs]+rho*4}:{XA[xs]+rho*4+3}], v[{c}:{c+3}]"
def g2_dma(role, buf):
    ops = []
    for t in range(8):
        ins = []
        if t % 4 == 0: ins.append(("m0", f"s_add_u32 m0, s36, {buf*STG2 + t*1024}"))
        if role == "A": ins.append(("dma", f"buffer_load_dwordx4 v{V2_D + t//4}, s[8:11], s28 offen offset:{(t%4)*1024} sc1 lds"))
        else: ins.append(("dma", f"buffer_load_dwordx4 v{V2_D + t}, s[12:15], s28 offen offset:{(t%4)*1024} lds"))
        ops.append(ins)
    return ops
def g2_adv(role): return ["s_add_u32 s28, s28, 262144"] if role == "A" else ["s_add_u32 s28, s28, 131072"]
G2_SWITCH = {"B": ["s_cmp_eq_u32 s31, s40", "s_cselect_b32 s12, s38, s12", "s_cselect_b32 s13, s39, s13",
                   "s_cselect_b32 s28, 0, s28"],
             "A": []}
ORD2 = [(rho, cb) for cb in range(4) for rho in range(4)]
def g2_reads(st, sl, xs):
    r = [("X", 0, g2_xread(0, st, sl, xs)), ("W", 0, g2_wread(0, 0, st, sl, xs)), ("W", 0, g2_wread(0, 1, st, sl, xs))]
    r += [("X", i, g2_xread(i, st, sl, xs)) for i in (1, 2, 3)]
    for cb in (1, 2, 3): r += [("W", cb, g2_wread(cb, h, st, sl, xs)) for h in (0, 1)]
    return r
def g2_segment(a, role, st, P, endw="s_waitcnt vmcnt(16) lgkmcnt(0)\ns_barrier", side=None):
    fill = [[] for _ in range(33)]
    for part in range(2):
        rd = g2_reads(st, part, part)
        span = P.get("g2rspan", 12)
        for i, e in enumerate(rd): fill[part*16 + (i * span) // len(rd)].append((e[0], e[1] + 10*part, e[2]))
    if role is not None:
        if st == 1:
            for t in G2_SWITCH[role]: fill[0].append(("S", 0, t))
        ops = g2_dma(role, (st + 3) % 4)
        d0, d1 = P.get("g2d0", 2), P.get("g2d1", 30)
        for i, ins in enumerate(ops):
            pos = d0 + (i * (d1 - d0)) // len(ops)
            for kind, txt in ins: fill[pos - 1 if kind == "m0" else pos].append(("S", 0, txt))
        for t in g2_adv(role): fill[31].append(("S", 0, t))
    mf = [(g2_mf(rho, cb, 1), None) for rho, cb in ORD2] + [(g2_mf(rho, cb, 0), [("X", rho), ("W", cb)]) for rho, cb in ORD2]
    emit_sched(a, mf, fill)
    a(endw)

def g2_ids(a):
    a("s_and_b32 s60, s2, 1")
    a("s_bfe_u32 s61, s2, 0x20001"); a("s_lshl_b32 s61, s61, 2")
    a("s_bfe_u32 s47, s2, 0x20003"); a("s_add_u32 s61, s61, s47")
    a("s_lshr_b32 s62, s2, 5")
    a("s_lshl_b32 s63, s62, 8")

def g2_vsetup(a, w):
    g2_ids(a)
    if w < 2:
        a(f"v_add_u32 v{V2_D}, {w*131072}, v3")
        a(f"v_add_u32 v{V2_D+1}, 4096, v{V2_D}")
        for t in range(2, 8): a(f"v_mov_b32 v{V2_D+t}, {BIG}")
    else:
        a(f"v_lshrrev_b32 v{T2}, 4, v1")
        a(f"v_bfe_u32 v{T2+1}, v1, 1, 3")
        a(f"v_and_b32 v{T2+2}, 1, v1")
        for t in range(2):
            a(f"v_add_u32 v{T2+3}, {4*t}, v{T2}")
            a(f"v_xor_b32 v{T2+4}, v{T2+3}, v{T2+1}")
            a(f"v_lshl_or_b32 v{T2+4}, v{T2+4}, 1, v{T2+2}")
            a(f"v_lshlrev_b32 v{T2+3}, 11, v{T2+3}")
            a(f"v_lshl_add_u32 v{T2+3}, v{T2+4}, 4, v{T2+3}")
            for u in range(t, 8, 2):
                a(f"v_add_u32 v{V2_D+u}, {(32*(w&1) + 4*(u-t))*2048 - 1024*(u%4)}, v{T2+3}")
    a(f"v_add_u32 v{R_A}, {(w>>1)*4096}, v3"); a(f"v_add_u32 v{R_A+1}, {2*STG2}, v{R_A}")
    a(f"v_add_u32 v{R_A+2}, 2048, v{R_A}"); a(f"v_add_u32 v{R_A+3}, {2*STG2}, v{R_A+2}")
    a(f"v_lshrrev_b32 v{T2}, 2, v1")
    a(f"v_and_b32 v{T2+1}, 7, v{T2}")
    a(f"v_and_b32 v{T2+2}, 3, v1")
    a(f"v_lshlrev_b32 v{T2+2}, 3, v{T2+2}")
    a(f"v_lshl_add_u32 v{T2+2}, v{T2}, 8, v{T2+2}")
    a(f"v_add_u32 v{T2+2}, 16384, v{T2+2}")
    for cb in range(4):
        a(f"v_xor_b32 v{T2+3}, {(w&1)*4 + cb}, v{T2+1}")
        a(f"v_lshl_add_u32 v{R_B+2*cb}, v{T2+3}, 5, v{T2+2}")
        a(f"v_add_u32 v{R_B+2*cb+1}, {2*STG2}, v{R_B+2*cb}")
    a("s_lshl_b32 s47, s61, 8"); a(f"s_add_u32 s47, s47, {F2_OFF}")
    a(f"v_lshl_add_u32 v{T2+5}, v1, 2, s47")
    a(f"v_lshrrev_b32 v{T2+7}, 2, v1"); a(f"v_lshlrev_b32 v{T2+7}, 11, v{T2+7}")
    a(f"v_and_b32 v{T2}, 1, v1"); a(f"v_lshl_add_u32 v{T2+7}, v{T2}, 7, v{T2+7}")
    a(f"v_and_b32 v{T2}, 2, v1"); a(f"v_lshl_add_u32 v{T2+7}, v{T2}, 9, v{T2+7}")
    a(f"v_add_u32 v{T2+7}, 256, v{T2+7}")
    a("s_lshl_b32 s4, s61, 7"); a(f"s_add_u32 s4, s4, {(w>>1)*64}")
    a("s_lshl_b32 s4, s4, 11")
    a(f"s_add_u32 s5, s63, {(w&1)*128}"); a("s_add_u32 s4, s4, s5")
    X = T2 + 9
    a(f"v_and_b32 v{X}, 15, v1"); a(f"v_lshlrev_b32 v{X}, 11, v{X}")
    a(f"v_and_b32 v{T2+1}, 16, v1"); a(f"v_lshl_add_u32 v{X}, v{T2+1}, 1, v{X}")
    a(f"v_and_b32 v{T2+1}, 32, v1"); a(f"v_lshrrev_b32 v{T2+1}, 1, v{T2+1}"); a(f"v_add3_u32 v{X}, v{X}, v{T2+1}, s4")

def g2_ssetup(a, P):
    NE = P.get('ne', 32); NF = 72 - NE; HR = (2*NE - 32) * 32
    ITE = (NE + 3) // 4; ITF = (NF + 3) // 4
    g2_ids(a)
    a("s_lshl_b32 s41, s61, 13")
    a(f"s_add_u32 s47, s41, {WS_A2}")
    srd(a, 8, P_WS, "s47", 0)
    a(f"s_add_u32 s38, s{P_D}, s63"); a(f"s_addc_u32 s39, s{P_D+1}, 0"); a("s_and_b32 s39, s39, 0xffff")
    a(f"s_add_u32 s4, s38, {HR*2048}"); a("s_addc_u32 s5, s39, 0")
    a(f"s_add_u32 s6, s{P_WO}, s63"); a(f"s_addc_u32 s7, s{P_WO+1}, 0"); a("s_and_b32 s7, s7, 0xffff")
    a(f"s_add_u32 s92, s{P_D}, {HR*2048}"); a(f"s_addc_u32 s93, s{P_D+1}, 0")
    a(f"s_mov_b32 s10, {144*131072}"); a(f"s_mov_b32 s14, {(3584-HR)*2048}")
    a("s_cmp_eq_u32 s60, 1")
    a(f"s_cselect_b32 s10, {2*NE*131072}, s10")
    a("s_cselect_b32 s12, s6, s4"); a("s_cselect_b32 s13, s7, s5"); a(f"s_cselect_b32 s14, {max(HR,1024)*2048}, s14")
    a(f"s_cselect_b32 s40, {ITE-3}, 100")
    a(f"s_cselect_b32 s31, {ITE}, {ITF}")
    a(f"s_cselect_b32 s6, 0, {2*NE*131072}")
    a(f"s_cselect_b32 s92, s{P_WO}, s92"); a(f"s_cselect_b32 s93, s{P_WO+1}, s93")
    a("s_mov_b32 s94, s14")
    a("s_and_b32 s93, s93, 0xffff"); a("s_mov_b32 s95, 0x00020000")
    a("s_sub_u32 s10, s10, s41"); a("s_sub_u32 s14, s14, s63"); a("s_mov_b32 s15, 0x00020000")
    a("s_lshr_b32 s97, s2, 3"); a("s_lshl_b32 s97, s97, 14")
    a(f"s_add_u32 s59, s97, {512*2048}")
    a("s_cmp_lt_u32 s32, 2")
    a("s_cselect_b32 s28, s6, 0")
    a("s_lshl_b32 s36, s32, 13")

def gen(a, P):
    KN = NAME + "_kernel"
    a.kernel(KN, (256,1,1), 256, 163840, vgpr=NV, agpr=NA, sgpr=102)
    a.launch[-1] = "; @launch grid=(256,1,1) block=(256,1,1) lds=163840"
    a("s_cmp_ge_u32 s2, 256")
    a("s_cbranch_scc1 L_end")
    a("s_load_dwordx16 s[64:79], s[0:1], 0")
    a("s_load_dwordx4 s[80:83], s[0:1], 64")
    a("s_getpc_b64 s[4:5]")
    if P.get("tl"): a("v_mov_b32 v255, 0")
    stamp(a, P, 0)
    a("v_and_b32 v1, 63, v0")
    a("v_lshrrev_b32 v2, 6, v0")
    L = 76
    a("v_and_b32 v4, 7, v1")
    a("v_lshrrev_b32 v5, 3, v1")
    a("v_readfirstlane_b32 s32, v2")
    a("s_lshl_b32 s3, s2, 3")
    a("v_add_u32 v6, s3, v4")
    a("v_lshlrev_b32 v7, 11, v6")
    a("s_lshl_b32 s47, s32, 9")
    a("v_lshl_add_u32 v8, v5, 4, v7")
    a("v_add_u32 v8, s47, v8")
    a("v_mov_b32 v9, 0")
    a("s_lshr_b32 s48, s2, 3"); a("s_lshl_b32 s48, s48, 2"); a("s_add_u32 s48, s48, s32"); a("s_lshl_b32 s48, s48, 9")
    a("v_lshlrev_b32 v13, 7, v1")
    a("s_and_b32 s5, s5, 0xffff"); a("s_and_b32 s4, s4, 0xffffff00"); a("s_mov_b32 s6, L_end_code-" + KN); a("s_mov_b32 s7, 0x00020000")
    a("s_waitcnt lgkmcnt(0)")
    if P.get("wsoff"):
        a(f"s_add_u32 s{P_WS}, s{P_WS}, {P['wsoff'] << 20}"); a(f"s_addc_u32 s{P_WS+1}, s{P_WS+1}, 0")
    srd(a, 24, P_X, 0, 4 << 20)
    for i in range(4):
        a(f"buffer_load_dwordx4 v[{L+4*i}:{L+4*i+3}], v8, s[24:27], 0 offen offset:{128*i} nt")
    a("buffer_load_dword v10, v7, s[24:27], 0 offen nt")
    srd(a, S_FL, P_WS, WS_FLAG, FLAG_BYTES)
    a(f"s_mov_b32 s47, {EP_OFF}")
    a(f"buffer_load_dword v11, v9, s[{S_FL}:{S_FL+3}], s47 offen sc1")
    a("s_mov_b64 exec, 15")
    a(f"buffer_load_dword v{V_T+8}, v13, s[4:7], s48 offen")
    a("s_mov_b64 exec, -1")
    a("s_and_b32 s33, s2, 7")
    a("s_lshl_b32 s33, s33, 2")
    a("s_bfe_u32 s34, s2, 0x20003")
    a("s_add_u32 s33, s33, s34")
    a("s_lshr_b32 s34, s2, 5")
    a("s_movk_i32 s54, 6144"); a("s_movk_i32 s55, 7168")
    a("v_lshlrev_b32 v3, 4, v1")
    T = [f"v{V_T+i}" for i in range(8)]
    VPF = V_T + 11
    PFP = P.get("pfp", 7)
    a(f"s_movk_i32 s57, {(65536+6)//7}"); a("s_movk_i32 s49, 896")
    a("s_cmp_eq_u32 s32, 1")
    a(f"s_cselect_b32 s92, s{P_QKV}, s{P_G}"); a(f"s_cselect_b32 s93, s{P_QKV+1}, s{P_G+1}")
    a("s_cselect_b32 s56, 6, 7"); a(f"s_cselect_b32 s57, {(65536+5)//6}, s57")
    a("s_cselect_b32 s58, s54, s55")
    a("s_cselect_b32 s49, 256, s49")
    a("s_cselect_b32 s50, 1792, 0")
    a("s_cmp_eq_u32 s32, 3")
    a(f"s_cselect_b32 s92, s{P_U}, s92"); a(f"s_cselect_b32 s93, s{P_U+1}, s93")
    a("s_and_b32 s93, s93, 0xffff"); a("s_lshl_b32 s94, s58, 10"); a("s_mov_b32 s95, 0x00020000")
    a(f"v_mul_u32_u24 {T[0]}, s57, v1")
    a(f"v_lshrrev_b32 {T[0]}, 16, {T[0]}")
    a(f"v_mul_u32_u24 {T[1]}, s56, {T[0]}")
    a(f"v_sub_u32 {T[1]}, v1, {T[1]}")
    a("s_lshr_b32 s47, s2, 3")
    a(f"v_lshl_add_u32 {T[2]}, {T[0]}, 5, s47")
    a(f"v_mul_u32_u24 {T[2]}, s58, {T[2]}")
    a(f"v_lshl_add_u32 {T[2]}, {T[1]}, 7, {T[2]}")
    a(f"v_lshrrev_b32 {T[3]}, 1, {T[1]}")
    a(f"v_mul_u32_u24 {T[3]}, s50, {T[3]}")
    a("s_and_b32 s47, s2, 7"); a("s_mul_i32 s47, s47, s49")
    a(f"v_add3_u32 {T[2]}, {T[2]}, {T[3]}, s47")
    a("s_cmp_eq_u32 s32, 0")
    a(f"s_cselect_b32 s49, 0, {PFP}"); a("s_cselect_b32 s50, 0, 4")
    a(f"v_mov_b32 {T[3]}, {BIG}")
    a(f"v_cmp_gt_u32 vcc, s49, {T[0]}")
    a("s_nop 1")
    a(f"v_cndmask_b32 {T[4]}, {T[3]}, {T[2]}, vcc")
    a(f"v_cmp_gt_u32 vcc, s50, {T[0]}")
    a(f"buffer_load_dword v{V_T+8}, {T[4]}, s[92:95], 0 offen")
    a(f"v_cndmask_b32 v{VPF}, {T[3]}, {T[2]}, vcc")
    a(f"s_mul_i32 s59, s58, {PFP*32}")
    a("s_lshl_b32 s97, s58, 7")
    a("v_lshrrev_b32 v12, 2, v5")
    a("v_lshlrev_b32 v12, 17, v12")
    a("v_and_b32 v13, 3, v5")
    a("v_lshl_add_u32 v12, v13, 8, v12")
    a("v_lshrrev_b32 v13, 4, v6")
    a("v_lshl_add_u32 v12, v13, 10, v12")
    a("v_and_b32 v13, 15, v6")
    a("v_lshl_add_u32 v12, v13, 4, v12")
    a("s_lshl_b32 s47, s32, 20")
    a("v_add_u32 v12, s47, v12")
    srd(a, 8, P_WS, 0, 4 << 20)
    a("s_mov_b32 s60, 0x40000"); a("s_mov_b32 s61, 0x80000"); a("s_mov_b32 s62, 0xc0000")
    a("v_lshlrev_b32 v13, 5, v4")
    a(f"v_add_u32 v13, {XCH}, v13")
    a("s_lshl_b32 s47, s32, 3")
    a("v_add_u32 v14, s47, v13")
    a("s_waitcnt vmcnt(2)")
    stamp(a, P, 1)
    a(f"v_readfirstlane_b32 s{S_EP}, v11")
    a("v_lshlrev_b32 v10, 16, v10")
    F = 92
    for k in range(16):
        a(f"v_lshlrev_b32 v{F+2*k}, 16, v{L+k}")
        a(f"v_and_b32 v{F+2*k+1}, 0xffff0000, v{L+k}")
    a(f"s_add_u32 s{S_EP}, s{S_EP}, 1")
    a("v_mov_b32 v11, v10")
    a(f"v_pk_add_f32 v[16:17], v[{F}:{F+1}], v[10:11] neg_lo:[0,1] neg_hi:[0,1]")
    a("v_pk_mul_f32 v[18:19], v[16:17], v[16:17]")
    for k in range(2, 32, 2):
        a(f"v_pk_add_f32 v[20:21], v[{F+k}:{F+k+1}], v[10:11] neg_lo:[0,1] neg_hi:[0,1]")
        a("v_pk_add_f32 v[16:17], v[16:17], v[20:21]")
        a("v_pk_fma_f32 v[18:19], v[20:21], v[20:21], v[18:19]")
    a("v_add_f32 v16, v16, v17"); a("v_add_f32 v17, v18, v19")
    a("s_nop 0")
    a("v_add_f32_dpp v16, v16, v16 row_ror:8 row_mask:0xf bank_mask:0xf")
    a("v_add_f32_dpp v17, v17, v17 row_ror:8 row_mask:0xf bank_mask:0xf")
    for op in ("v_permlane16_swap_b32", "v_permlane32_swap_b32"):
        a("v_mov_b32 v18, v16"); a("v_mov_b32 v19, v17")
        a("s_nop 1")
        a(f"{op} v16, v18"); a(f"{op} v17, v19")
        a("s_nop 1")
        a("v_pk_add_f32 v[16:17], v[16:17], v[18:19]")
    a("ds_write_b64 v14, v[16:17]")
    a("s_waitcnt lgkmcnt(0)")
    a("s_barrier")
    a("ds_read_b128 v[20:23], v13")
    a("ds_read_b128 v[24:27], v13 offset:16")
    a("s_waitcnt lgkmcnt(0)")
    a("v_pk_add_f32 v[16:17], v[20:21], v[22:23]")
    a("v_pk_add_f32 v[18:19], v[24:25], v[26:27]")
    a("v_pk_add_f32 v[16:17], v[16:17], v[18:19]")
    a(f"v_mul_f32 v16, {1.0/1024!r}, v16")
    a(f"v_mul_f32 v17, {1.0/1024!r}, v17")
    a("v_fma_f32 v17, -v16, v16, v17")
    a("v_max_f32 v17, 0, v17")
    a("v_add_f32 v16, v16, v10")
    bf16_round(a, "v17", "v17")
    a(f"v_add_f32 v17, {1e-5!r}, v17")
    bf16_round(a, "v17", "v17")
    a("v_sqrt_f32 v17, v17")
    bf16_round(a, "v16", "v16")
    bf16_round(a, "v17", "v17")
    a("v_rcp_f32 v20, v17")
    a("v_mov_b32 v17, v16")
    a("v_mov_b32 v21, v20")
    for i in range(4):
        for d in range(4):
            o = F + 2*(4*i+d)
            a(f"v_pk_add_f32 v[{o}:{o+1}], v[{o}:{o+1}], v[16:17] neg_lo:[0,1] neg_hi:[0,1]")
            a(f"v_cvt_pk_bf16_f32 v18, v{o}, v{o+1}")
            a(f"v_lshlrev_b32 v{o}, 16, v18"); a(f"v_and_b32 v{o+1}, 0xffff0000, v18")
            a(f"v_pk_mul_f32 v[{o}:{o+1}], v[{o}:{o+1}], v[20:21]")
            a(f"v_cvt_pk_bf16_f32 v{L+4*i+d}, v{o}, v{o+1}")
        a(f"buffer_store_dwordx4 v[{L+4*i}:{L+4*i+3}], v12, s[8:11], {'0' if i == 0 else 's%d' % (59+i)} offen sc1")
    stamp(a, P, 2)
    a("s_cmp_eq_u32 s34, 0")
    a("s_cselect_b32 s35, 0, 1024")
    a("s_lshl_b32 s42, s34, 14")
    a("s_sub_u32 s42, s42, s35")
    a("s_lshl_b32 s43, s33, 6")
    a("s_mul_i32 s44, s33, 224")
    a("s_mov_b32 s28, 0"); a("s_mov_b32 s29, 0"); a("s_mov_b32 s30, 0")
    a("s_and_b32 s45, s33, 1")
    a("s_lshl_b32 s46, s45, 1")
    a("s_movk_i32 s52, 5462"); a("s_movk_i32 s53, 4682")
    srd(a, 12, P_QKV, "s43", 0); a(f"s_sub_u32 s14, {1024*6144}, s43")
    srd(a, 16, P_G, "s44", 0); a(f"s_sub_u32 s18, {1024*7168}, s44")
    srd(a, 20, P_U, "s44", 0); a(f"s_sub_u32 s22, {1024*7168}, s44")
    srd(a, 24, P_WS, WS_A2, A2_BYTES)
    a("s_lshl_b32 s47, s34, 5")
    a("s_sub_u32 s47, s47, 2")
    a(f"v_add_u32 v{V_T+12}, s47, v1")
    a(f"v_max_i32 v{V_T+12}, 0, v{V_T+12}")
    a(f"v_lshlrev_b32 v{V_T+12}, 2, v{V_T+12}")
    a("s_mov_b32 s31, 8")
    for r_ in range(V_DMA + 8, V_DMA + 10): a(f"v_mov_b32 v{r_}, {BIG}")
    for w in range(1, 4):
        a(f"s_cmp_eq_u32 s32, {w}")
        a(f"s_cbranch_scc1 L_g1_w{w}")
    def common(w):
        a("s_call_b64 s[62:63], L_common")
        g2_vsetup(a, w)
        a(f"v_lshlrev_b32 {T[0]}, 7, v1"); a(f"v_mov_b32 {T[1]}, {BIG}")
        a(f"v_cmp_gt_u32 vcc, {28 if w == 0 else 8}, v1"); a("s_nop 1")
        a(f"v_cndmask_b32 v{V_T+9}, {T[1]}, {T[0]}, vcc")
        if w == 0: srd(a, 48, P_D, 0, 3584*2048); a("s_mul_i32 s60, s2, 28672")
        else: srd(a, 48, P_WO, 0, 1024*2048); a("s_lshl_b32 s60, s2, 13")
        a("s_lshl_b32 s47, s34, 14"); a(f"s_add_u32 s47, s47, {w*4096}")
        a(f"v_add_u32 v{VS}, s47, v3")
        a("s_lshl_b32 s47, s45, 3")
        a(f"v_add_u32 v{VS+1}, s47, v{VS}")
    for w in range(4):
        a.label(f"L_g1_w{w}")
        vi = 0
        for g in dma_groups(w):
            for gi, s_ in enumerate(g):
                kind, idx = slot_info(s_)
                d = f"v{V_DMA+vi}"
                if kind == "A":
                    if idx == 0: a(f"v_mov_b32 {d}, v3")
                    else:
                        a(f"s_add_u32 s47, s35, {(idx-1)*1024 - gi*1024}")
                        a(f"v_add_u32 {d}, s47, v3")
                elif kind == "Q":
                    a(f"v_add_u32 {T[0]}, {idx*64}, v1")
                    a(f"v_mul_u32_u24 {T[1]}, s52, {T[0]}")
                    a(f"v_lshrrev_b32 {T[1]}, 16, {T[1]}")
                    a(f"v_mul_u32_u24 {T[2]}, 12, {T[1]}")
                    a(f"v_sub_u32 {T[2]}, {T[0]}, {T[2]}")
                    kperm_code(a, T[3], T[1], T[4])
                    a(f"v_mul_u32_u24 {T[3]}, s54, {T[3]}")
                    a(f"v_lshrrev_b32 {T[4]}, 2, {T[2]}")
                    a(f"v_lshl_add_u32 {T[3]}, {T[4]}, 11, {T[3]}")
                    a(f"v_lshrrev_b32 {T[4]}, 1, {T[1]}")
                    a(f"v_xor_b32 {T[4]}, {T[4]}, {T[2]}")
                    a(f"v_and_b32 {T[4]}, 2, {T[4]}")
                    a(f"v_and_or_b32 {T[4]}, {T[2]}, 1, {T[4]}")
                    a(f"v_lshl_add_u32 {T[3]}, {T[4]}, 4, {T[3]}")
                    a(f"v_subrev_u32 {d}, {gi*1024}, {T[3]}")
                else:
                    a(f"v_add_u32 {T[0]}, {idx*64}, v1")
                    a(f"v_mul_u32_u24 {T[1]}, s53, {T[0]}")
                    a(f"v_lshrrev_b32 {T[1]}, 16, {T[1]}")
                    a(f"v_mul_u32_u24 {T[2]}, 14, {T[1]}")
                    a(f"v_sub_u32 {T[2]}, {T[0]}, {T[2]}")
                    a(f"v_add_u32 {T[2]}, s46, {T[2]}")
                    a(f"v_subrev_u32 {T[4]}, 14, {T[2]}")
                    a(f"v_min_u32 {T[2]}, {T[2]}, {T[4]}")
                    kperm_code(a, T[3], T[1], T[4])
                    a(f"v_mul_u32_u24 {T[3]}, s55, {T[3]}")
                    a(f"v_lshl_add_u32 {T[3]}, {T[2]}, 4, {T[3]}")
                    a(f"v_subrev_u32 {d}, {gi*1024}, {T[3]}")
                vi += 1
        a(f"v_add_u32 v{V_RX}, {(1+4*w)*1024}, v3")
        a(f"v_add_u32 v{V_RX+1}, {(1+4*w)*1024 + 2*STG}, v3")
        a("s_waitcnt vmcnt(0)")
        a("s_barrier")
        stamp(a, P, 3)
        if w == 0:
            a("s_lshl_b32 s47, s2, 2")
            flag_store(a, "s47", "v15", "v16")
        srd(a, 8, P_WS, "s42", 0); a(f"s_sub_u32 s10, {4<<20}, s42")
        def dmas():
            for sl in range(3):
                for ins in dma_ops(w, sl):
                    for kind, txt in ins:
                        a(txt)
                        if kind == "m0": a("s_nop 0")
                for txt in soff_adv(w): a(txt)
        if w < 2:
            common(w)
            poll(a, V_T+12, T2+10, 34, P)
            stamp(a, P, 4)
            dmas()
        else:
            dmas()
            stamp(a, P, 4)
            common(w)
        n = len(dma_slots(w))
        a(f"s_waitcnt vmcnt({2*n})")
        a("s_barrier")
        stamp(a, P, 5)
        a(".p2align 6")
        a.label(f"L_g1_loop{w}")
        for st in range(4):
            if st == 0 and w >= 1:
                a(f"buffer_load_dword v{V_T+8}, v{VPF}, s[92:95], s59 offen")
                a("s_add_u32 s59, s59, s97")
            g1_segment(a, w, st, P)
            if st == 0 and w < 2:
                a(f"buffer_load_dword v{V_T+8}, v{V_T+9}, s[48:51], s60 offen")
                a(f"s_add_u32 s60, s60, {3584 if w == 0 else 1024}")
            if st == 0 and w == 3:
                a("s_cmp_lg_u32 s31, 1")
                a("s_cbranch_scc1 L_g1_nopfo")
                a(f"s_add_u32 s48, s{P_D}, {(2*P.get('ne', 32) - 32)*32*2048}"); a(f"s_addc_u32 s49, s{P_D+1}, 0")
                a("s_bitcmp1_b32 s2, 0")
                a(f"s_cselect_b32 s48, s{P_WO}, s48"); a(f"s_cselect_b32 s49, s{P_WO+1}, s49"); a("s_and_b32 s49, s49, 0xffff")
                a("s_lshr_b32 s47, s2, 3"); a("s_lshl_b32 s47, s47, 15")
                a(f"buffer_load_dword v{V_T+8}, v{T2+7}, s[48:51], s47 offen")
                a.label("L_g1_nopfo")
            if st == 1:
                a("s_cmp_eq_u32 s31, 1")
                a("s_cbranch_scc1 L_g1_fin")
        a("s_sub_u32 s31, s31, 1")
        a(f"s_branch L_g1_loop{w}")
    a(".p2align 6")
    a.label("L_g1_fin")
    a("s_lshl_b32 s48, s33, 17")
    a("s_mul_i32 s49, s33, 7"); a("s_add_u32 s49, s49, 1"); a("s_lshr_b32 s49, s49, 1"); a("s_add_u32 s49, s49, 32"); a("s_lshl_b32 s49, s49, 17")
    a("s_add_u32 s50, s49, 0x20000")
    a("s_add_u32 s51, s49, 0x40000")
    a("s_lshr_b32 s52, s33, 1"); a("s_mul_i32 s52, s52, 7"); a("s_add_u32 s52, s52, 35"); a("s_lshl_b32 s52, s52, 17")
    a("s_waitcnt vmcnt(0)")
    a("s_barrier")
    rest = g1_final(a, P)
    stamp(a, P, 6)
    epilogue_g1(a, P, rest)
    g2_phase(a, P)
    if P.get("tl"):
        a("s_waitcnt vmcnt(0)")
        stamp(a, P, 15)
        srd(a, 92, P_WS, WS_TL, 65536)
        a("s_lshl_b32 s47, s2, 8")
        a("s_lshl_b32 s48, s32, 6")
        a("s_add_u32 s47, s47, s48")
        a("v_lshlrev_b32 v12, 2, v1")
        a("s_mov_b64 exec, 0xffff")
        if P.get("tl") == 2:
            srd(a, 92, P_DBG, 0, 256)
            a("s_mov_b64 exec, 1")
            a("v_not_b32 v255, v255")
            a("s_mov_b64 exec, 0xffff")
            a("buffer_atomic_umax v255, v12, s[92:95], 0 offen sc1")
        else:
            a("buffer_store_dword v255, v12, s[92:95], s47 offen")
    a.label("L_end")
    a("s_endpgm")
    a.label("L_common")
    a(f"v_mov_b32 v{V_RH}, v3")
    a(f"v_add_u32 v{V_RH+1}, {2*STG}, v3")
    a(f"v_lshrrev_b32 {T[0]}, 2, v1")
    a(f"v_and_b32 {T[1]}, 3, v1")
    a(f"v_lshlrev_b32 {T[1]}, 3, {T[1]}")
    a(f"v_mul_u32_u24 {T[2]}, 192, {T[0]}")
    a(f"v_add_u32 {T[2]}, {T[2]}, {T[1]}")
    a(f"v_and_b32 {T[3]}, 16, v1")
    a(f"v_lshlrev_b32 {T[3]}, 1, {T[3]}")
    a(f"v_add_u32 v{V_RQ}, {T[2]}, {T[3]}")
    a(f"v_add_u32 v{V_RQ+1}, {2*STG}, v{V_RQ}")
    a(f"v_xor_b32 {T[3]}, 32, {T[3]}")
    a(f"v_add_u32 v{V_RQ+2}, {T[2]}, {T[3]}")
    a(f"v_add_u32 v{V_RQ+3}, {2*STG}, v{V_RQ+2}")
    a(f"v_mul_u32_u24 {T[2]}, 224, {T[0]}")
    a(f"v_add3_u32 v{V_RG}, {T[2]}, {T[1]}, s63") if False else None
    a(f"v_add_u32 v{V_RG}, {T[2]}, {T[1]}")
    a(f"v_add_u32 v{V_RG}, {OFF_G}, v{V_RG}")
    a(f"v_add_u32 v{V_RG+1}, {2*STG}, v{V_RG}")
    for r_ in range(NA): a(f"v_accvgpr_write_b32 a{r_}, 0")
    for r_ in range(4, V_DMA, 2): a(f"v_mov_b64 v[{r_}:{r_+1}], 0")
    a("s_setpc_b64 s[62:63]")
    a.label("L_end_code")

def epilogue_g1(a, P, rest):
    QP, KP, VP0, VP1, HP, B, SH, ONES, S = 4, 32, 52, 62, 20, 22, 28, 72, 104
    T = V_T
    def pack(dst, src):
        for t in pack_t(dst, src): a(t)
    for tb in range(4):
        pack(KP + 4 + tb*4, V_K + tb*8); pack(KP + 4 + tb*4 + 2, V_K + tb*8 + 4)
    for tb in range(4):
        pack(VP0 + (tb+1)*2, V_V + tb*8); pack(VP1 + (tb+1)*2, V_V + tb*8 + 4)
    a("s_lshl_b32 s47, s32, 11")
    a(f"s_add_u32 s47, s47, {XCH + 2048}")
    a(f"v_add_u32 v{T}, s47, v3")
    a(f"v_lshrrev_b32 v{T+1}, 1, v3")
    a(f"v_add_u32 v{T+2}, s47, v{T+1}")
    a(f"ds_write_b128 v{T}, v[{KP+16}:{KP+19}]")
    a(f"ds_write_b64 v{T+2}, v[{VP0+8}:{VP0+9}] offset:1024")
    a(f"ds_write_b64 v{T+2}, v[{VP1+8}:{VP1+9}] offset:1536")
    for tb in range(4):
        pack(QP + tb*4, V_Q + tb*8); pack(QP + tb*4 + 2, V_Q + tb*8 + 4)
    pack(HP, V_H)
    a("s_lshl_b32 s57, s32, 3")
    a("s_lshl_b32 s58, s32, 9")
    a("s_cmp_lt_u32 s32, 2")
    a("s_cselect_b32 s56, 4, 3")
    a("s_cselect_b32 s57, s57, s58")
    a(f"s_add_u32 s57, s57, {XCH}")
    a(f"v_lshlrev_b32 v{T+3}, s56, v1")
    a(f"v_add_u32 v{T+3}, s57, v{T+3}")
    a(f"ds_write_b64 v{T+3}, v[{HP}:{HP+1}]")
    g2_ssetup(a, P)
    a("s_waitcnt lgkmcnt(0)")
    a("s_barrier")
    a(f"ds_read_b128 v[{KP}:{KP+3}], v{T} offset:63488")
    a.lines.pop()
    a(f"v_subrev_u32 v{T}, 2048, v{T}")
    a(f"v_subrev_u32 v{T+2}, 2048, v{T+2}")
    a(f"ds_read_b128 v[{KP}:{KP+3}], v{T}")
    a(f"ds_read_b64 v[{VP0}:{VP0+1}], v{T+2} offset:1024")
    a(f"ds_read_b64 v[{VP1}:{VP1+1}], v{T+2} offset:1536")
    a("s_cmp_lt_u32 s32, 2")
    a("s_cbranch_scc1 L_epi_nob")
    for sl in range(3):
        for ins in g2_dma("B", sl):
            for kind, txt in ins:
                a(txt)
                if kind == "m0": a("s_nop 0")
        for t in g2_adv("B"): a(t)
    a.label("L_epi_nob")
    for t in rest: a(t)
    NEG = "0xf149f2ca"
    a(f"v_and_b32 v{T}, 15, v1")
    a(f"v_lshrrev_b32 v{T+1}, 4, v1")
    a(f"v_and_b32 v{T+2}, 1, v1")
    a(f"v_lshlrev_b32 v{SH}, 4, v{T+2}")
    a(f"v_lshl_add_u32 v{T+1}, v{T+1}, 2, v{T+2}")
    a(f"v_add_u32 v{T+3}, 2, v{T+1}")
    a(f"v_add_u32 v{T+4}, 2, v{T}")
    a(f"v_mov_b32 v{T+5}, {NEG}")
    a(f"v_cmp_eq_u32 s[56:57], 1, v{T+2}")
    a(f"v_cmp_le_u32 s[4:5], v{T+1}, v{T}")
    a(f"v_cmp_le_u32 s[6:7], v{T+3}, v{T}")
    a(f"v_cmp_ge_u32 s[42:43], v{T+1}, v{T+4}")
    a(f"v_cmp_ge_u32 s[44:45], v{T+3}, v{T+4}")
    for i in range(4): a(f"v_mov_b32 v{ONES+i}, 0x3f803f80")
    a(f"v_cndmask_b32 v{B}, v{T+5}, 0, s[4:5]")
    a(f"v_cndmask_b32 v{B+1}, v{T+5}, 0, s[6:7]")
    a(f"v_cndmask_b32 v{B+2}, v{T+5}, 0, s[42:43]")
    a(f"v_cndmask_b32 v{B+3}, v{T+5}, 0, s[44:45]")
    a("s_or_b32 s47, s34, s32")
    a("s_cmp_eq_u32 s47, 0")
    a("s_cselect_b64 vcc, -1, 0")
    a(f"v_cndmask_b32 v{B+4}, v{B+2}, v{T+5}, vcc")
    a(f"v_cndmask_b32 v{B+5}, v{B+3}, v{T+5}, vcc")
    a("s_waitcnt lgkmcnt(0)")
    U = lambda tb: S + tb*16
    C = (32 ** -0.5) * math.log2(math.e)
    a(f"s_mov_b32 s47, {hex(f32bits(C))}")
    for tb in (1, 2, 3, 0):
        u = U(tb)
        a(f"v_mfma_f32_16x16x32_bf16 v[{u}:{u+3}], v[{KP+tb*4}:{KP+tb*4+3}], v[{QP+tb*4}:{QP+tb*4+3}], 0")
        a(f"v_mfma_f32_16x16x32_bf16 v[{u+4}:{u+7}], v[{KP+tb*4+4}:{KP+tb*4+7}], v[{QP+tb*4}:{QP+tb*4+3}], 0")
    a("s_nop 2")
    for tb in (1, 2, 3, 0):
        u = U(tb)
        for k in range(4): a(f"v_cndmask_b32 v{u+8+k}, v{u+2*k}, v{u+2*k+1}, s[56:57]")
        pb = B+4 if tb == 0 else B+2
        a(f"v_fma_f32 v{u+8}, v{u+8}, s47, v{pb}")
        a(f"v_fma_f32 v{u+9}, v{u+9}, s47, v{pb+1}")
        a(f"v_fma_f32 v{u+10}, v{u+10}, s47, v{B}")
        a(f"v_fma_f32 v{u+11}, v{u+11}, s47, v{B+1}")
        a(f"v_max3_f32 v{u+12}, v{u+8}, v{u+9}, v{u+10}")
        a(f"v_max_f32 v{u+12}, v{u+12}, v{u+11}")
        a(f"v_mov_b32 v{u+13}, v{u+12}")
    for op in ("v_permlane32_swap_b32", "v_permlane16_swap_b32"):
        a("s_nop 1")
        for tb in (1, 2, 3, 0): a(f"{op} v{U(tb)+12}, v{U(tb)+13}")
        for tb in (1, 2, 3, 0): a(f"v_max_f32 v{U(tb)+12}, v{U(tb)+12}, v{U(tb)+13}")
        if op.startswith("v_permlane32"):
            for tb in (1, 2, 3, 0): a(f"v_mov_b32 v{U(tb)+13}, v{U(tb)+12}")
    for tb in (1, 2, 3, 0):
        u = U(tb)
        for k in range(4): a(f"v_sub_f32 v{u+8+k}, v{u+8+k}, v{u+12}")
        for k in range(4): a(f"v_exp_f32 v{u+8+k}, v{u+8+k}")
        a("s_nop 0")
        for k in range(4): a(f"v_cvt_pk_bf16_f32 v{u+8+k}, v{u+8+k}, 0")
        for k in range(4): a(f"v_lshlrev_b32 v{u+8+k}, v{SH}, v{u+8+k}")
        a("s_nop 1")
        a(f"v_mfma_f32_16x16x32_bf16 v[{u+12}:{u+15}], v[{ONES}:{ONES+3}], v[{u+8}:{u+11}], 0")
        a(f"v_mfma_f32_16x16x32_bf16 v[{u}:{u+3}], v[{VP0+tb*2}:{VP0+tb*2+3}], v[{u+8}:{u+11}], 0")
        a(f"v_mfma_f32_16x16x32_bf16 v[{u+4}:{u+7}], v[{VP1+tb*2}:{VP1+tb*2+3}], v[{u+8}:{u+11}], 0")
    for tb in (1, 2, 3, 0):
        u = U(tb)
        a(f"v_rcp_f32 v{u+12}, v{u+12}")
        a("s_nop 0")
        a(f"v_mov_b32 v{u+13}, v{u+12}")
        for k in range(0, 8, 2): a(f"v_pk_mul_f32 v[{u+k}:{u+k+1}], v[{u+k}:{u+k+1}], v[{u+12}:{u+13}]")
        pack(u+8, u); pack(u+10, u+4)
        a(f"buffer_store_dwordx4 v[{u+8}:{u+11}], v{VS}, s[24:27], s48 offen offset:{tb*1024} {P.get('a2s', 'sc1')}")
    a("s_lshl_b32 s53, s34, 1"); a("s_lshr_b32 s47, s32, 1"); a("s_add_u32 s53, s53, s47"); a("s_lshl_b32 s53, s53, 8")
    a("s_lshl_b32 s47, s33, 3"); a("s_add_u32 s53, s53, s47")
    a("s_and_b32 s47, s32, 1"); a("s_lshl_b32 s47, s47, 2"); a("s_add_u32 s53, s53, s47")
    a(f"s_add_u32 s53, s53, {F2_OFF}")
    a("s_lshl_b32 s37, s2, 2"); a("s_add_u32 s37, s37, s32"); a("s_lshl_b32 s37, s37, 7")

def g2_phase(a, P):
    XST = P.get('ne', 32) % 4
    stamp(a, P, 7)
    a("s_nop 1")
    for r_ in list(range(4, 52, 2)) + list(range(64, 104, 2)): a(f"v_mov_b64 v[{r_}:{r_+1}], 0")
    a("s_waitcnt vmcnt(0)")
    stamp(a, P, 8)
    flag_store(a, "s53", f"v{T2}", f"v{T2+1}")
    for r_ in range(104, 144, 2): a(f"v_mov_b64 v[{r_}:{r_+1}], 0")
    a("s_lshl_b32 s47, s2, 2"); a("s_add_u32 s47, s47, s32")
    a("s_cmp_lg_u32 s47, 3")
    a("s_cbranch_scc1 L_noep")
    for k in range(4):
        a(f"v_lshlrev_b32 v{T2+6}, 2, v1")
        a(f"v_add_u32 v{T2+6}, {k*256}, v{T2+6}")
        poll(a, T2+6, T2+10, 64, P, depth=1)
    a(f"s_mov_b32 s47, {EP_OFF}")
    flag_store(a, "s47", f"v{T2}", f"v{T2+1}")
    a.label("L_noep")
    if P.get("p1w", 1):
        a("s_cmp_lg_u32 s32, 0")
        a("s_cbranch_scc1 L_g2_np")
        poll(a, T2+5, T2+10, 64, P, depth=P.get("pd2", 1))
        a.label("L_g2_np")
        a("s_barrier")
    a("s_cmp_ge_u32 s32, 2")
    a("s_cbranch_scc1 L_g2_B")
    for role in ("A", "B"):
        if role == "B": a.label("L_g2_B")
        if role == "A":
            if not P.get("p1w", 1): poll(a, T2+5, T2+10, 64, P)
            stamp(a, P, 9)
            for sl in range(3):
                for ins in g2_dma("A", sl):
                    for kind, txt in ins:
                        a(txt)
                        if kind == "m0": a("s_nop 0")
                for t in g2_adv("A"): a(t)
            a("s_waitcnt vmcnt(16)")
        a("s_barrier")
        stamp(a, P, 10)
        a(".p2align 6")
        a.label(f"L_g2_loop{role}")
        if role == "B" and P.get("g2pf", 1):
            a("s_cmp_lg_u32 s32, 2")
            a("s_cbranch_scc1 L_g2_nopfb")
            a("s_add_u32 s47, s40, 1")
            a("s_cmp_eq_u32 s31, s47")
            a(f"s_cselect_b32 s92, s{P_D}, s92"); a("s_cselect_b32 s93, s39, s93"); a("s_cselect_b32 s59, s97, s59")
            a("s_mov_b64 exec, 0xffffffff")
            a(f"buffer_load_dword v{T2+8}, v{T2+7}, s[92:95], s59 offen")
            a("s_mov_b64 exec, -1")
            a(f"s_add_u32 s59, s59, {256*2048}")
            a.label("L_g2_nopfb")
        for st in range(4):
            g2_segment(a, role, st, P)
            if st == XST:
                a(f"s_cmp_eq_u32 s31, {1 if XST == 0 else 2}")
                a("s_cbranch_scc1 L_g2_fin")
        a("s_sub_u32 s31, s31, 1")
        a(f"s_branch L_g2_loop{role}")
    a(".p2align 6")
    a.label("L_g2_fin")
    T = T2; X = T2 + 9
    IMP = 144
    srd(a, 16, P_WS, WS_PART, 4 << 20)
    srd(a, 24, P_X, 0, 4 << 20)
    srd(a, 20, P_OUT, 0, 4 << 20)
    a("s_lshr_b32 s55, s2, 1"); a("s_lshl_b32 s55, s55, 15"); a("s_lshl_b32 s56, s32, 13"); a("s_add_u32 s55, s55, s56")
    a("s_add_u32 s57, s55, 4096")
    for i in range(1, 4): a(f"s_mov_b32 s{48+i}, {32768*i}")
    RS = lambda rho: "0" if rho == 0 else f"s{48+rho}"
    a("s_or_b32 s53, s37, 512"); a(f"s_add_u32 s53, s53, {F3_OFF}")
    a(f"v_mov_b32 v{T+5}, s53")
    g2_segment(a, None, (XST+1)%4, P, endw="s_waitcnt vmcnt(8) lgkmcnt(0)\ns_barrier")
    a("s_cmp_eq_u32 s60, 1")
    a("s_cbranch_scc1 L_fin_e1")
    a("s_mov_b64 exec, 1")
    a(f"buffer_load_dword v{T+10}, v{T+5}, s[{S_FL}:{S_FL+3}], 0 offen sc1")
    a("s_mov_b64 exec, -1")
    a("s_branch L_fin_2")
    a.label("L_fin_e1")
    for rho in range(4):
        for pr in range(2):
            d = IMP + (rho*2+pr)*4
            a(f"buffer_load_dwordx4 v[{d}:{d+3}], v{X}, s[24:27], {RS(rho)} offen offset:{pr*64}")
    a.label("L_fin_2")
    g2_segment(a, None, (XST+2)%4, P, endw="s_waitcnt vmcnt(8) lgkmcnt(0)")
    def imports():
        for b in range(8):
            d = IMP + b*4
            a(f"buffer_load_dwordx4 v[{d}:{d+3}], v3, s[16:19], {'s55' if b < 4 else 's57'} offen offset:{(b%4)*1024} sc1")
    a("s_mov_b32 s58, 1")
    a("s_cmp_eq_u32 s60, 1")
    a("s_cbranch_scc1 L_fin_3")
    a("s_waitcnt vmcnt(0)")
    a(f"v_readfirstlane_b32 s47, v{T+10}")
    a(f"s_cmp_eq_u32 s47, s{S_EP}")
    a("s_cselect_b32 s58, 1, 0")
    a("s_cbranch_scc0 L_fin_3")
    imports()
    a.label("L_fin_3")
    a("s_barrier")
    g2_segment(a, None, (XST+3)%4, P, endw="s_waitcnt lgkmcnt(0)")
    for rho in range(4):
        for cb in range(4): a(g2_mf(rho, cb, 1))
    stamp(a, P, 11)
    a("s_cmp_eq_u32 s58, 1")
    a("s_cbranch_scc1 L_fin_4")
    poll(a, T+5, T+10, 1, P)
    imports()
    a.label("L_fin_4")
    stamp(a, P, 13)
    def combine(i, store):
        rho, pr = i // 2, i % 2
        c0 = ACC2 + (rho*4 + pr*2)*4; c1 = c0 + 4
        for k in range(4): a(f"v_permlane16_swap_b32 v{c0+k}, v{c1+k}")
        a(f"s_waitcnt vmcnt(7)")
        xd = IMP + i*4
        for k in range(4):
            a(f"v_lshlrev_b32 v{T+2}, 16, v{xd+k}")
            a(f"v_and_b32 v{T+3}, 0xffff0000, v{xd+k}")
            a(f"v_pk_add_f32 v[{c0+2*k}:{c0+2*k+1}], v[{c0+2*k}:{c0+2*k+1}], v[{T+2}:{T+3}]")
            a(f"v_cvt_pk_bf16_f32 v{xd+k}, v{c0+2*k}, v{c0+2*k+1}")
        a(store(i, xd, rho, pr))
    a("s_cmp_eq_u32 s60, 1")
    a("s_cbranch_scc1 L_fin_e2")
    for i in range(8):
        combine(i, lambda i, xd, rho, pr: f"buffer_store_dwordx4 v[{xd}:{xd+3}], v{X}, s[20:23], {RS(rho)} offen offset:{pr*64}")
    a("s_branch L_fin_5")
    a.label("L_fin_e2")
    for i in range(8):
        combine(i, lambda i, xd, rho, pr: f"buffer_store_dwordx4 v[{xd}:{xd+3}], v3, s[16:19], {'s55' if i < 4 else 's57'} offen offset:{(i%4)*1024} sc1")
    a("s_waitcnt vmcnt(0)")
    stamp(a, P, 12)
    flag_store(a, "s53", f"v{T+1}", f"v{T+2}")
    a.label("L_fin_5")
    stamp(a, P, 14)

if __name__ == "__main__":
    out = sys.argv[1]
    P = json.loads(sys.argv[2]) if len(sys.argv) > 2 else {}
    a = Asm()
    gen(a, P)
    hdr = "".join(open("cdna_kernels/" + NAME + ".s.ref").readlines()[:11])
    open(out, "w").write(a.text(hdr))
```
